```python
import torch

def _softmax(x, axis=-1):
    return torch.softmax(x, dim=axis)

def _gelu(x):
    return torch.nn.functional.gelu(x, approximate='tanh')

def _silu(x):
    return torch.nn.functional.silu(x)

def _sigmoid(x):
    return torch.sigmoid(x)

def _layernorm(x, axis=-1, eps=1e-05):
    m = x.mean(dim=axis, keepdim=True)
    v = x.var(dim=axis, keepdim=True, unbiased=False)
    return (x - m) / torch.sqrt(v + eps)

def _scatter_add(tgt, idx, src, axis=0):
    return tgt.clone().index_add_(axis, idx, src)

def _segment_sum(src, seg, n):
    out = torch.zeros((n,) + src.shape[1:], dtype=src.dtype)
    return out.index_add_(0, seg, src)

def _pad(x, pw):
    flat = tuple((v for pair in reversed(pw) for v in pair))
    return torch.nn.functional.pad(x, flat)
kernel_name = 'standalone__factorization_afm__recsys'

def setup_inputs():

    _w = lambda a: (lambda t: t.to(torch.bfloat16) if t.is_floating_point() else t)(torch.as_tensor(a))
    B, F, D, V = (1024, 100, 32, min(1000000, 100000))
    A = D
    ii, jj = tuple(torch.triu_indices(F, F, 1).unbind(0))
    return {'idx': _w((lambda lo, hi, *s: torch.randint(lo, hi, s))(0, V, B, F).to(torch.int64)), 'table': _w((lambda *s: torch.randn(*s, dtype=torch.bfloat16) * 0.8)(V, D)), 'ii': _w(ii.to(torch.int64)), 'jj': _w(jj.to(torch.int64)), 'W': _w((lambda *s: torch.randn(*s, dtype=torch.bfloat16) * 0.8)(D, A) * (1.0 / D ** 0.5)), 'b': _w((lambda *s: torch.randn(*s, dtype=torch.bfloat16) * 0.8)(A)), 'h': _w((lambda *s: torch.randn(*s, dtype=torch.bfloat16) * 0.8)(A)), 'p': _w((lambda *s: torch.randn(*s, dtype=torch.bfloat16) * 0.8)(D))}

def reference(idx, table, ii, jj, W, b, h, p):
    emb = table[idx]
    ei = emb[:, ii, :].clone()
    ej = emb[:, jj, :].clone()
    pair = ei * ej
    hid = pair @ W + b
    hid = 0.5 * (hid + torch.abs(hid))
    e = hid @ h
    alpha = _softmax(e, axis=-1)
    pooled = torch.einsum('bp,bpd->bd', alpha, pair)
    return pooled @ p
```

```python
import re
TRANS = ("v_exp_", "v_log_", "v_rcp_", "v_rsq_", "v_sqrt_", "v_sin_", "v_cos_")
def regs(tok):
    tok = tok.strip().strip("|").lstrip("-").strip("|")
    m = re.fullmatch(r"v\[(\d+):(\d+)\]", tok)
    if m: return set(range(int(m.group(1)), int(m.group(2)) + 1))
    m = re.fullmatch(r"v(\d+)", tok)
    if m: return {int(m.group(1))}
    return set()
def parse(line):
    line = line.split(";")[0].strip()
    if not line or line.endswith(":") or line.startswith("."): return None
    parts = line.split(None, 1)
    op = parts[0]
    ops = []
    if len(parts) > 1:
        ops = [t.strip() for t in parts[1].split(",")]
        if ops: ops[-1] = ops[-1].split()[0] if ops[-1] else ops[-1]
    d = dict(op=op, line=line, w=set(), r=set(), kind="other", c=set(), ab=set(), passes=0, states=1, dpp=("dpp" in op or "row_" in line))
    if op == "s_nop": d["states"] = int(ops[0], 0) + 1
    if op.startswith("v_mfma"):
        d["kind"] = "mfma"; d["w"] = regs(ops[0]); d["ab"] = regs(ops[1]) | regs(ops[2]); d["c"] = regs(ops[3]); d["r"] = d["ab"] | d["c"]
        d["passes"] = 8 if "32x32" in op else 4
    elif op.startswith("v_smfmac"):
        d["kind"] = "mfma"; d["w"] = regs(ops[0]); d["ab"] = regs(ops[1]) | regs(ops[2]) | regs(ops[3]); d["c"] = regs(ops[0]); d["r"] = d["ab"] | d["c"]
        d["passes"] = 8 if "32x32" in op else 4
    elif op.startswith("v_"):
        d["kind"] = "valu"
        if op.startswith("v_cmp") or op.startswith("v_readfirstlane") or op.startswith("v_readlane"):
            for t in ops[1:]: d["r"] |= regs(t)
        else:
            d["w"] = regs(ops[0])
            for t in ops[1:]: d["r"] |= regs(t)
            if op.startswith("v_fmac") or "swap" in op or d["dpp"] or op.startswith("v_writelane"): d["r"] |= d["w"]
            if "swap" in op: d["w"] |= regs(ops[1])
        d["trans"] = op.startswith(TRANS)
    elif op.startswith("ds_read"):
        d["kind"] = "ld"; d["w"] = regs(ops[0]); d["r"] = regs(ops[1])
    elif op.startswith("ds_write"):
        d["kind"] = "st"
        for t in ops: d["r"] |= regs(t)
    elif op.startswith(("buffer_load", "global_load")):
        d["kind"] = "ld"; d["w"] = regs(ops[0]); d["r"] = regs(ops[1])
    elif op.startswith(("buffer_store", "global_store")):
        d["kind"] = "st"
        for t in ops: d["r"] |= regs(t)
    return d
def check(lines, name=""):
    ins = [p for p in (parse(l) for l in lines) if p]
    bad = 0
    for i, c in enumerate(ins):
        dist = 0
        for j in range(i - 1, max(-1, i - 24), -1):
            p = ins[j]
            need = 0
            if p["kind"] == "valu":
                if c["kind"] == "mfma" and p["w"] & c["r"]: need = 2
                if c["kind"] == "valu" and p.get("trans") and not c.get("trans") and p["w"] & c["r"]: need = max(need, 1)
                if c["kind"] == "valu" and (c["dpp"] or "permlane" in c["op"]) and p["w"] & c["r"]: need = max(need, 2)
                if c["kind"] == "valu" and c["op"].startswith(("v_readfirstlane", "v_readlane")) and p["w"] & c["r"]: need = max(need, 1)
                if c["kind"] == "valu" and p["op"].startswith("v_dot") and not c["op"].startswith("v_dot") and p["w"] & (c["r"] | c["w"]): need = max(need, 3)
            if p["kind"] == "mfma":
                n8 = p["passes"] == 8
                if c["kind"] == "mfma":
                    if p["w"] & c["ab"]: need = 12 if n8 else 8
                    if p["w"] & c["c"]:
                        if not (p["w"] == c["c"] and p["passes"] == c["passes"]): need = max(need, 10 if n8 else 6)
                    elif p["w"] & c["w"]:
                        need = max(need, 10 if n8 else 6)
                elif c["kind"] in ("valu", "ld", "st"):
                    if p["w"] & (c["r"] | c["w"]): need = 12 if n8 else 8
                    if c["kind"] == "valu" and p["c"] & c["w"]: need = max(need, 7 if n8 else 3)
            if p["kind"] == "st" and "x4" in p["op"] and c["kind"] == "valu" and p["r"] & c["w"]: need = max(need, 2)
            if need > dist:
                print("HAZARD[%s]: need %d have %d\n   %s\n   %s" % (name, need, dist, p["line"], c["line"]))
                bad += 1
            dist += p["states"]
    return bad
```

```python
import sys, struct
sys.path.insert(0, "gen")
import hz

NAME = "standalone__factorization_afm__recsys"
def f32(x): return "0x%08x" % struct.unpack("<I", struct.pack("<f", x))[0]
def R(b, n): return "v[%d:%d]" % (b, b + n - 1)
LOG2E = 1.4426950408889634

RB = 104; EG = 202; EP = 254; ZR = 410; NROW = 462
PS = NROW * 16
BS = 4 * PS
SCR = 4 * BS
RED = SCR + 512
LDS = RED + 128
BETA = 4

W = 8; BIAS = 24; V = 56; E = 88; T = 104; D = 120; P = 168; HA = 184; LA = 200; LD = 208; CI = 216
LAL, ACA, LBE, ACB = 224, 225, 226, 227
P0, P1, TT, TZ = 228, 229, 230, 231
AT1, AT2, AE, ALA = 232, 233, 234, 235
IDX = 236; LANE = 237; AX = 238; AY = 239; FLAG = 240; LBASE = 241
NV = 244
VS = V; VB = V + 16; ES = E; EB = E + 8; T1 = T; T2 = T + 8
S_WAVE, S_BL, S_ROLE, S_BB, S_CNT, S_THA, S_THB, S_TAU, S_SX, S_SY, S_T0, S_T1 = 20, 21, 22, 23, 24, 25, 26, 27, 28, 29, 30, 31
S_H = 48
S_TS = 64
THR_E = 40.0

class Gen:
    def __init__(self, stamps=False):
        self.L = []; self.cold = []; self.nrare = 0; self.stamps = stamps; self.nst = 0
    def e(self, *l):
        for x in l:
            if isinstance(x, (list, tuple)): self.e(*x)
            else: self.L.append(x)
    def stamp(self):
        if self.stamps:
            self.e("s_memrealtime s[%d:%d]" % (S_TS + 2 * self.nst, S_TS + 2 * self.nst + 1)); self.nst += 1

    jobs = [(VS, T1, 0, 0), (VB, T1, 0, 1), (VS, T1, 1, 0), (VB, T1, 1, 1), (VB, T2, 0, 1), (VB, T2, 1, 1)]
    def mf(self, a, t, h, d):
        return ["v_mfma_f32_32x32x16_f16 %s, %s, %s, %s" % (R(d, 16), R(a + 8 * h, 4), R(t, 4), R(BIAS + 16 * h, 16)),
                "v_mfma_f32_32x32x16_f16 %s, %s, %s, %s" % (R(d, 16), R(a + 8 * h + 4, 4), R(t + 4, 4), R(d, 16))]
    def cvt(self, d, pb):
        return ["v_cvt_pk_bf16_f32 v%d, |v%d|, |v%d|" % (pb + i, d + 2 * i, d + 2 * i + 1) for i in range(8)]
    def smf(self, dd, pos, h, pb):
        return "v_smfmac_f32_16x16x64_bf16 %s, %s, %s, v%d" % (R(dd, 4), R(HA + 8 * pos + 4 * h, 4), R(pb, 8), IDX)
    def vgen(self, v, e, h):
        return ["v_pk_mul_f16 v%d, v%d, v%d" % (v + 8 * h + i, W + 8 * h + i, e + i) for i in range(8)]
    def ls(self, dd, t, ci):
        return ["v_mfma_f32_16x16x32_f16 %s, %s, %s, %s" % (R(dd, 4), R(LA, 4), R(t, 4), R(ci, 4)),
                "v_mfma_f32_16x16x32_f16 %s, %s, %s, %s" % (R(dd, 4), R(LA + 4, 4), R(t + 4, 4), R(dd, 4))]
    def rd(self, r, a, off): return "ds_read_b128 %s, v%d offset:%d" % (R(r, 4), a, off)
    def rd2(self, r, a, off): return [self.rd(r, a, off), self.rd(r + 4, a, off + 2 * PS)]

    def rare(self, es, l, acc, cis, sthr, thr, tail):
        n = self.nrare; self.nrare += 1
        c = ["L_rare%d:" % n, "s_nop 7",
             "v_mov_b32 v%d, 0xff800000" % TZ,
             "v_cmp_eq_f32 vcc, 0, v%d" % l, "s_nop 1",
             "v_cndmask_b32 v%d, 0, v%d, vcc" % (TT, TZ)]
        for x in es: c.append("v_max_f32 v%d, v%d, v%d" % (TT, TT, x))
        c += ["v_cmp_eq_f32 vcc, v%d, v%d" % (TZ, TT), "s_nop 1",
              "v_cndmask_b32 v%d, v%d, 0, vcc" % (TT, TT)]
        for x in es: c.append("v_sub_f32 v%d, v%d, v%d" % (x, x, TT))
        for x in cis: c.append("v_sub_f32 v%d, v%d, v%d" % (x, x, TT))
        c += ["v_max_f32 v%d, 0, v%d" % (TT, TT), "v_exp_f32 v%d, -v%d" % (TT, TT), "s_nop 0",
              "v_mul_f32 v%d, v%d, v%d" % (l, l, TT), "v_mul_f32 v%d, v%d, v%d" % (acc, acc, TT),
              "s_mov_b32 s%d, %s" % (sthr, f32(thr))]
        c += tail + ["s_nop 1", "s_branch L_back%d" % n]
        self.cold += c
        return ["s_cbranch_vccnz L_rare%d" % n, "L_back%d:" % n]
    def soft_a(self):
        head = ["v_exp_f32 v%d, v%d" % (P0, LD), "v_exp_f32 v%d, v%d" % (P1, LD + 1)]
        add = "v_add_f32 v%d, v%d, v%d" % (TT, P0, P1)
        br = self.rare([LD, LD + 1], LAL, ACA, [CI, CI + 1], S_THA, 2.0 ** THR_E, head + ["s_nop 0", add])
        return head, [add, "v_cmp_nge_f32 vcc, s%d, v%d" % (S_THA, TT)], br, \
            ["v_add_f32 v%d, v%d, v%d" % (LAL, LAL, TT), "v_fmac_f32 v%d, v%d, v%d" % (ACA, P0, LD + 2), "v_fmac_f32 v%d, v%d, v%d" % (ACA, P1, LD + 3)]
    def soft_b(self):
        ex = "v_exp_f32 v%d, v%d" % (P0, LD + 5)
        br = self.rare([LD + 5], LBE, ACB, [CI + 5], S_THB, THR_E, [ex])
        return ["v_cmp_nge_f32 vcc, s%d, v%d" % (S_THB, LD + 5), ex], br, \
            ["v_add_f32 v%d, v%d, v%d" % (LBE, LBE, P0), "v_fmac_f32 v%d, v%d, v%d" % (ACB, P0, LD + 7)]

    def body(self, cur=True, prev=True):
        J = self.jobs
        def cv(k):
            kk = k % 6
            if (k < 0 and not prev) or (k >= 0 and not cur): return []
            return self.cvt(D + 16 * (kk % 3), P + 8 * (kk % 2))
        def sm(k):
            kk = k % 6
            if (k < 0 and not prev) or (k >= 0 and not cur): return []
            return [self.smf(LD + (4 if kk >= 4 else 0), J[kk][3], J[kk][2], P + 8 * (kk % 2))]
        vS0, vS1, vB0, vB1 = self.vgen(VS, ES, 0), self.vgen(VS, ES, 1), self.vgen(VB, EB, 0), self.vgen(VB, EB, 1)
        if not cur: vS0 = vS1 = vB0 = vB1 = []
        sa = sb = None
        if prev: sa = self.soft_a(); sb = self.soft_b()
        add = lambda a: ["v_add_u32 v%d, 32, v%d" % (a, a)] if cur else []
        out = []
        for k in range(6):
            m = self.mf(J[k][0], J[k][1], J[k][2], D + 16 * (k % 3)) if cur else [None, None]
            c = cv(k - 2); s = sm(k - 3)
            pre, mem, ins = [], [], list(s)
            if k == 0:
                pre = ["s_waitcnt lgkmcnt(0)"]; mem = self.rd2(LA, ALA, 0) + self.rd2(ES, AE, 32)
                l = c + vB0[4:] + vB1[:3] + add(ALA)
            elif k == 1:
                mem = self.rd2(T2, AT2, 0)
                if prev: l = c[:6] + sa[0] + c[6:] + sa[1] + vB1[3:5] + sa[2] + sa[3]
                else: l = vB1[3:5] + ["s_nop 1"]
                l = l + add(AT2)
            elif k == 2:
                pre = ["s_waitcnt lgkmcnt(2)"]
                l = c + vB1[5:] + vS0[:3]
                if cur: ins += self.ls(LD, T1, CI)
            elif k == 3:
                mem = self.rd2(EB, AE, 32 + RB * 16)
                if prev: l = c[:6] + sb[0] + c[6:] + vS0[3:5] + sb[1] + sb[2]
                else: l = c + vS0[3:5]
                l = l + add(AE)
            elif k == 4:
                pre = ["s_waitcnt lgkmcnt(2)"]; mem = self.rd2(T1, AT1, 32)
                l = c + vS0[5:] + vS1[:4] + add(AT1)
            else:
                l = c + vS1[4:] + ["s_waitcnt lgkmcnt(2)"] + vB0[:4]
                if cur: ins += self.ls(LD + 4, T2, CI + 4)
            if not cur:
                if k > 3: break
                out += ["s_nop 7"] + l + ["s_nop 1"] + ins
                continue
            out += pre + [m[0]] + mem
            def take(n):
                nonlocal l
                got = []; cost = 0
                while l and cost < n:
                    x = l.pop(0); got.append(x)
                    cost += 2 if x.startswith("v_exp") else (1 if x.startswith("v_") else 0)
                return got
            out += take(6) + [m[1]] + take(6)
            for x in ins:
                out += [x] + take(1 if "smfmac" in x else 2)
            out += l
        return out

    def build(self):
        e = self.e
        G0 = D
        IX = D + 16
        WL = D + 20
        X = D + 36
        WR = V
        BL = V + 16
        HL = V + 24
        PL = V + 28
        GV = E; PV = E + 4
        AW = E + 8
        M = T
        e("s_cmp_ge_u32 s2, 256", "s_cbranch_scc1 L_end")
        self.stamp()
        e("s_load_dwordx2 s[4:5], s[0:1], 0", "s_load_dwordx2 s[36:37], s[0:1], 8", "s_load_dwordx4 s[8:11], s[0:1], 32",
          "s_load_dwordx4 s[12:15], s[0:1], 48", "s_load_dwordx4 s[16:19], s[0:1], 64")
        e("v_lshrrev_b32 v1, 6, v0", "v_and_b32 v%d, 63, v0" % LANE,
          "v_readfirstlane_b32 s%d, v1" % S_WAVE,
          "v_and_b32 v2, 60, v0",
          "s_mov_b32 s6, 409600", "s_mov_b32 s7, 0x00020000", "s_mov_b32 s38, 6400000", "s_mov_b32 s39, 0x00020000",
          "s_and_b32 s%d, s%d, 3" % (S_BL, S_WAVE), "s_lshr_b32 s%d, s%d, 2" % (S_ROLE, S_WAVE),
          "s_lshl_b32 s3, s2, 2", "s_add_u32 s3, s3, s%d" % S_BL,
          "s_mul_i32 s%d, s3, 400" % S_T0, "s_mul_i32 s%d, s%d, 208" % (S_T1, S_ROLE), "s_add_u32 s%d, s%d, s%d" % (S_T0, S_T0, S_T1),
          "v_add_u32 v2, s%d, v2" % S_T0)
        e("v_lshrrev_b32 v3, 5, v%d" % LANE,
          "v_and_b32 v4, 1, v%d" % LANE, "v_bfe_u32 v5, v%d, 2, 3" % LANE, "v_lshl_add_u32 v4, v5, 1, v4",
          "v_lshlrev_b32 v4, 2, v4", "v_lshl_add_u32 v4, v3, 9, v4",
          "s_waitcnt lgkmcnt(0)")
        for i in range(4): e("buffer_load_dword v%d, v2, s[4:7], 0 offen offset:%d" % (IX + i, 64 * i))
        e("s_load_dwordx16 s[%d:%d], s[12:13], 0" % (S_H, S_H + 15))
        for ks in range(2):
            for jj in range(8): e("global_load_dword v%d, v4, s[8:9] offset:%d" % (WL + 8 * ks + jj, 1024 * ks + 64 * jj))
        e("v_and_b32 v5, 31, v%d" % LANE, "v_lshlrev_b32 v5, 6, v5",
          "v_lshlrev_b32 v6, 3, v3",
          "v_bfe_u32 v7, v%d, 4, 1" % LANE, "v_lshlrev_b32 v7, 3, v7", "v_lshl_add_u32 v7, v3, 5, v7",
          "v_and_b32 v1, 3, v%d" % LANE, "v_lshlrev_b32 v1, 4, v1")
        for c in range(4): e("global_load_dwordx4 %s, v5, s[8:9] offset:%d" % (R(WR + 4 * c, 4), 16 * c))
        for u in range(4): e("global_load_dwordx2 %s, v6, s[10:11] offset:%d" % (R(BL + 2 * u, 2), 16 * u))
        for t in range(2): e("global_load_dwordx2 %s, v7, s[12:13] offset:%d" % (R(HL + 2 * t, 2), 16 * t))
        e("global_load_dwordx4 %s, v1, s[14:15]" % R(PL, 4))
        e("s_lshl_b32 s%d, s%d, 30" % (S_T0, S_ROLE), "v_cmp_lt_u32 vcc, 15, v%d" % LANE, "v_mov_b32 v%d, 0x40000000" % X,
          "s_mul_i32 s%d, s%d, %d" % (S_BB, S_BL, BS),
          "v_cndmask_b32 v%d, 0, v%d, vcc" % (X, X), "v_or_b32 v%d, s%d, v%d" % (X, S_T0, X), "v_or_b32 v%d, v%d, v1" % (X, X))
        e("s_waitcnt vmcnt(27)")
        self.stamp()
        for i in range(4):
            e("v_lshl_or_b32 v%d, v%d, 6, v%d" % (IX + i, IX + i, X if i == 3 else 1))
            e("buffer_load_dwordx4 %s, v%d, s[36:39], 0 offen" % (R(G0 + 4 * i, 4), IX + i))
        e("s_mul_i32 s%d, s%d, %d" % (S_T0, S_ROLE, 13 * 32), "s_add_u32 s%d, s%d, s%d" % (S_T0, S_T0, S_BB),
          "v_mul_u32_u24 v2, %d, v3" % PS,
          "v_and_b32 v5, 31, v%d" % LANE,
          "v_cmp_lt_u32 vcc, 23, v5", "v_add_u32 v6, 2, v5", "v_add_u32 v7, 82, v5",
          "v_cndmask_b32 v6, v6, v7, vcc", "v_lshl_add_u32 v6, v6, 4, v2", "v_add_u32 v%d, s%d, v6" % (AT1, S_T0),
          "v_cmp_lt_u32 vcc, 15, v5", "v_add_u32 v6, 26, v5", "v_xor_b32 v7, 24, v5", "v_add_u32 v7, 114, v7",
          "v_cndmask_b32 v6, v6, v7, vcc", "v_lshl_add_u32 v6, v6, 4, v2", "v_add_u32 v%d, s%d, v6" % (AT2, S_T0),
          "v_bfe_u32 v6, v%d, 1, 1" % LANE, "v_lshl_add_u32 v6, v6, 4, v2", "v_add_u32 v%d, s%d, v6" % (AE, S_T0),
          "v_bfe_u32 v6, v%d, 1, 1" % LANE, "v_mul_u32_u24 v6, 52, v6", "v_and_b32 v7, 1, v%d" % LANE, "v_mul_u32_u24 v7, 104, v7",
          "v_add_u32 v6, v6, v7", "v_bfe_u32 v7, v%d, 3, 1" % LANE, "v_add_u32 v6, v6, v7", "v_add_u32 v6, %d, v6" % EG,
          "v_lshl_add_u32 v6, v6, 4, v2",
          "v_bfe_u32 v7, v%d, 2, 1" % LANE, "v_bfe_u32 v%d, v%d, 4, 1" % (X + 1, LANE), "v_cmp_eq_u32 vcc, v7, v%d" % (X + 1),
          "v_mov_b32 v7, %d" % (ZR * 16), "s_nop 0", "v_cndmask_b32 v6, v7, v6, vcc", "v_add_u32 v%d, s%d, v6" % (ALA, S_T0),
          "v_cmp_gt_u32 vcc, 25, v5", "v_lshlrev_b32 v6, 5, v5", "v_subrev_u32 v7, 25, v5", "v_mul_u32_u24 v7, 160, v7", "v_add_u32 v7, %d, v7" % (RB * 16),
          "v_cndmask_b32 v6, v7, v6, vcc", "v_add3_u32 v%d, v6, v2, s%d" % (LBASE, S_BB), "v_cndmask_b32 v%d, 0, 1, vcc" % FLAG,
          "v_and_b32 v6, 3, v%d" % LANE, "v_mul_u32_u24 v6, %d, v6" % PS, "v_bfe_u32 v7, v%d, 3, 1" % LANE, "v_mul_u32_u24 v7, %d, v7" % (RB * 16),
          "v_add_u32 v6, v6, v7", "v_lshrrev_b32 v7, 4, v%d" % LANE, "v_lshl_add_u32 v6, v7, 5, v6", "v_bfe_u32 v7, v%d, 2, 1" % LANE,
          "v_lshl_add_u32 v6, v7, 4, v6", "v_add_u32 v%d, s%d, v6" % (AW, S_T0),
          "v_bfe_u32 v6, v%d, 3, 1" % LANE, "v_mul_u32_u24 v6, 0xaaaa, v6", "v_add_u32 v%d, 0x4444, v6" % IDX)
        e("s_mul_i32 s%d, s%d, %d" % (S_T1, S_ROLE, 2 * PS), "s_add_u32 s%d, s%d, s%d" % (S_T1, S_T1, S_BB),
          "v_min_u32 v6, 51, v%d" % LANE, "v_lshlrev_b32 v6, 4, v6", "v_add_u32 v6, s%d, v6" % S_T1)
        for j in range(8): e("v_mov_b32 v%d, 0" % (CI + j))
        for j in range(4): e("v_mov_b32 v%d, 0" % (LAL + j))
        e("ds_write_b128 v6, %s offset:%d" % (R(CI, 4), ZR * 16))
        e("v_and_b32 v6, 7, v%d" % LANE)
        for pos in range(2):
            for c in range(2):
                e("v_cmp_eq_u32 vcc, %d, v6" % (4 * c + pos), "s_nop 1", "v_cndmask_b32 v%d, 0, -1, vcc" % (M + 2 * pos + c))
        e("s_mov_b32 s%d, %s" % (S_THA, f32(-1.0)), "s_mov_b32 s%d, 0xff800000" % S_THB)
        e("s_mov_b32 s40, %s" % f32(LOG2E * 2 ** BETA), "s_mov_b32 s41, %s" % f32(2.0 ** -(BETA + 1)), "s_mov_b32 s42, %s" % f32(0.5 * LOG2E),
          "s_mov_b32 s43, 0xffff0000")
        e("s_waitcnt vmcnt(4) lgkmcnt(0)")
        self.stamp()
        e("v_mov_b32 v%d, 0" % X)
        for j in range(16): e("v_dot2_f32_bf16 v%d, v%d, s%d, v%d" % (X, WR + j, S_H + j, X))
        e("s_lshl_b32 s%d, s%d, 6" % (S_T1, S_WAVE), "s_add_u32 s%d, s%d, %d" % (S_T1, S_T1, SCR),
          "v_lshlrev_b32 v6, 1, v5", "v_add_u32 v6, s%d, v6" % S_T1, "v_add_u32 v7, s%d, v1" % S_T1,
          "v_mul_f32 v%d, s42, v%d" % (X, X), "v_cvt_f16_f32 v%d, v%d" % (X, X), "ds_write_b16 v6, v%d" % X,
          "ds_read_b128 %s, v7" % R(GV, 4))
        for ks in range(2):
            for t in range(4):
                a, b = WL + 8 * ks + 2 * t, WL + 8 * ks + 2 * t + 1
                e("v_lshlrev_b32 v%d, 16, v%d" % (X, a), "v_lshlrev_b32 v%d, 16, v%d" % (X + 1, b),
                  "v_and_b32 v%d, s43, v%d" % (X + 2, a), "v_and_b32 v%d, s43, v%d" % (X + 3, b))
                for j in range(4): e("v_mul_f32 v%d, s40, v%d" % (X + j, X + j))
                e("v_cvt_pk_f16_f32 v%d, v%d, v%d" % (W + 4 * ks + t, X, X + 1), "v_cvt_pk_f16_f32 v%d, v%d, v%d" % (W + 8 + 4 * ks + t, X + 2, X + 3))
        for u in range(4):
            for b0 in range(2):
                src = BL + 2 * u + b0
                e("v_lshlrev_b32 v%d, 16, v%d" % (X, src), "v_and_b32 v%d, s43, v%d" % (X + 1, src))
                for x in range(2):
                    for nd in range(2): e("v_mul_f32 v%d, s40, v%d" % (BIAS + 16 * x + 4 * u + 2 * nd + b0, X + x))
        for t1 in range(2):
            a, b = HL + 2 * t1, HL + 2 * t1 + 1
            e("v_lshlrev_b32 v%d, 16, v%d" % (X, a), "v_lshlrev_b32 v%d, 16, v%d" % (X + 1, b),
              "v_and_b32 v%d, s43, v%d" % (X + 2, a), "v_and_b32 v%d, s43, v%d" % (X + 3, b))
            for j in range(4): e("v_mul_f32 v%d, s41, v%d" % (X + j, X + j))
            e("v_cvt_pk_bf16_f32 v%d, v%d, v%d" % (X + 4, X, X + 1), "v_cvt_pk_bf16_f32 v%d, v%d, v%d" % (X + 5, X + 2, X + 3))
            for pos in range(2):
                for x in range(2):
                    for c in range(2):
                        e("v_and_b32 v%d, v%d, v%d" % (HA + 8 * pos + 4 * x + 2 * c + t1, X + 4 + x, M + 2 * pos + c))
        for j in range(4):
            e("v_lshlrev_b32 v%d, 16, v%d" % (X, PL + j), "v_and_b32 v%d, s43, v%d" % (X + 1, PL + j),
              "v_cvt_pk_f16_f32 v%d, v%d, v%d" % (PV + j, X, X + 1))
        e("s_mul_i32 s44, s%d, 0x3f803f80" % S_ROLE)
        e("s_waitcnt lgkmcnt(0)")
        self.stamp()
        for i in range(4):
            g = G0 + 4 * i
            e("s_waitcnt vmcnt(%d)" % (3 - i))
            if i == 0: self.stamp()
            if i == 3:
                for j in range(4): e("v_or_b32 v%d, s44, v%d" % (g + j, g + j))
                e("s_mov_b64 exec, 0xffff")
            for j in range(4):
                e("v_lshlrev_b32 v%d, 16, v%d" % (X, g + j), "v_and_b32 v%d, s43, v%d" % (X + 1, g + j),
                  "v_cvt_pk_f16_f32 v%d, v%d, v%d" % (g + j, X, X + 1))
            w1 = "ds_write_b128 v%d, %s offset:%d" % (AW, R(g, 4), 128 * i)
            w2 = "ds_write_b128 v%d, %s offset:%d" % (AW, R(g, 4), 128 * i + 800)
            if i < 2: e(w1, w2)
            elif i == 2: e(w1, "s_cmp_lg_u32 s%d, 0" % S_ROLE, "s_cbranch_scc1 L_nodup2", w2, "L_nodup2:")
            else: e("s_cbranch_scc1 L_nodup3", w1, w2, "L_nodup3:")
            a, b = V + 8 * i, V + 8 * i + 4
            for j in range(4): e("v_pk_mul_f16 v%d, v%d, v%d" % (a + j, g + j, GV + j))
            e("ds_write_b128 v%d, %s offset:%d" % (AW, R(a, 4), 128 * i + EG * 16))
            for j in range(4): e("v_pk_mul_f16 v%d, v%d, v%d" % (b + j, g + j, PV + j))
            e("ds_write_b128 v%d, %s offset:%d" % (AW, R(b, 4), 128 * i + EP * 16))
        e("s_mov_b64 exec, -1", "s_waitcnt lgkmcnt(0)")
        self.stamp()
        e("s_barrier")
        self.stamp()
        e("s_mul_i32 s%d, s%d, %d" % (S_T0, S_ROLE, 13 * 32), "s_sub_u32 s%d, %d, s%d" % (S_T0, 25 * 32, S_T0),
          "v_add_u32 v%d, s%d, v%d" % (AX, S_T0, ALA))
        e(self.rd2(LA, AX, 0))
        e("s_cmp_eq_u32 s%d, 0" % S_ROLE, "s_cselect_b32 s%d, 4, 0" % S_TAU, "s_cselect_b32 s%d, 5, 4" % S_CNT)
        lo = ["L_left:",
              "s_lshr_b32 s%d, s%d, 1" % (S_SX, S_TAU), "s_and_b32 s%d, s%d, 1" % (S_SY, S_TAU), "s_add_u32 s%d, s%d, %d" % (S_SY, S_SY, RB),
              "s_cmp_eq_u32 s%d, 4" % S_TAU, "s_cselect_b32 s%d, 0, s%d" % (S_SX, S_SX), "s_cselect_b32 s%d, 1, s%d" % (S_SY, S_SY),
              "s_lshl_b32 s%d, s%d, 5" % (S_T0, S_TAU),
              "s_lshl_b32 s%d, s%d, 4" % (S_SX, S_SX), "s_lshl_b32 s%d, s%d, 4" % (S_SY, S_SY),
              "s_sub_i32 s%d, s%d, s%d" % (S_SX, S_SX, S_T0), "s_sub_i32 s%d, s%d, s%d" % (S_SY, S_SY, S_T0), "s_sub_i32 s%d, s%d, 16" % (S_SY, S_SY),
              "v_add_u32 v%d, s%d, v%d" % (TT, S_T0, LBASE),
              "v_mad_i32_i24 v%d, v%d, s%d, v%d" % (AX, FLAG, S_SX, TT), "v_mad_i32_i24 v%d, v%d, s%d, v%d" % (AY, FLAG, S_SY, TT)]
        lo += self.rd2(ES, AX, 0) + self.rd2(EB, AY, 16) + ["s_waitcnt lgkmcnt(0)"]
        lo += ["v_pk_mul_f16 v%d, v%d, v%d" % (T2 + i, ES + i, EB + i) for i in range(8)] + ["s_nop 1"]
        m0 = self.mf(W, T2, 0, D); m1 = self.mf(W, T2, 1, D + 16)
        lo += m0 + m1 + self.ls(LD + 4, T2, CI + 4) + ["s_nop 7"] + self.cvt(D, P) + self.cvt(D + 16, P + 8)
        lo += [self.smf(LD + 4, 1, 0, P), "s_nop 0", self.smf(LD + 4, 1, 1, P + 8), "s_mov_b64 exec, 0x3fffffff", "s_nop 6"]
        sb = self.soft_b()
        lo += sb[0] + sb[1] + sb[2] + ["s_mov_b64 exec, -1",
              "s_add_u32 s%d, s%d, 1" % (S_TAU, S_TAU), "s_cmp_lt_u32 s%d, s%d" % (S_TAU, S_CNT), "s_cbranch_scc1 L_left"]
        e(lo)
        self.stamp()
        e("s_mov_b32 s%d, 0xff800000" % S_THB)
        pre = self.rd2(ES, AE, 0) + self.rd2(EB, AE, RB * 16) + self.rd2(T1, AT1, 0) + ["s_sub_u32 s%d, 12, s%d" % (S_CNT, S_ROLE), "s_waitcnt lgkmcnt(2)"]
        pre += self.vgen(VS, ES, 0) + self.vgen(VS, ES, 1) + self.vgen(VB, EB, 0)[:4]
        first = self.body(prev=False)
        loop = self.body()
        drain = self.body(cur=False)
        e(pre, first, ".p2align 6" if False else [], "L_loop:", loop,
          "s_sub_u32 s%d, s%d, 1" % (S_CNT, S_CNT), "s_cmp_lg_u32 s%d, 0" % S_CNT, "s_cbranch_scc1 L_loop", drain)
        bad = hz.check(lo + lo, "left") + hz.check(lo + pre + first + loop + ["s_nop 2"] + loop + ["s_nop 2"] + drain, "main")
        self.stamp()
        A = D
        fin = ["v_min_f32 v%d, v%d, v%d" % (A, CI, CI + 5)]
        def red(op, regs_):
            o = []
            for mod in ("row_shr:1", "row_shr:2", "row_shr:4", "row_shr:8", "row_bcast:15 row_mask:0xa", "row_bcast:31 row_mask:0xc"):
                o.append("s_nop %d" % (1 if len(regs_) == 1 else 0))
                for r in regs_:
                    mm = mod if "row_mask" in mod else mod + " row_mask:0xf"
                    o.append("%s_dpp v%d, v%d, v%d %s bank_mask:0xf" % (op, r, r, r, mm))
            return o
        fin += red("v_min_f32", [A]) + ["s_nop 0", "v_readlane_b32 s%d, v%d, 63" % (S_T0, A), "s_nop 1",
               "v_sub_f32 v%d, s%d, v%d" % (A + 1, S_T0, CI), "v_sub_f32 v%d, s%d, v%d" % (A + 2, S_T0, CI + 5),
               "v_exp_f32 v%d, v%d" % (A + 1, A + 1), "v_exp_f32 v%d, v%d" % (A + 2, A + 2), "v_mov_b32 v%d, s%d" % (A + 4, S_T0),
               "v_mul_f32 v%d, v%d, v%d" % (A + 5, LAL, A + 1), "v_mul_f32 v%d, v%d, v%d" % (A + 6, ACA, A + 1),
               "v_fmac_f32 v%d, v%d, v%d" % (A + 5, LBE, A + 2), "v_fmac_f32 v%d, v%d, v%d" % (A + 6, ACB, A + 2)]
        fin += red("v_add_f32", [A + 5, A + 6])
        fin += ["s_lshl_b32 s%d, s%d, 4" % (S_T1, S_WAVE), "s_add_u32 s%d, s%d, %d" % (S_T1, S_T1, RED), "v_mov_b32 v%d, s%d" % (A + 8, S_T1),
                "s_mov_b32 exec_lo, 0", "s_mov_b32 exec_hi, 0x80000000",
                "ds_write_b128 v%d, %s" % (A + 8, R(A + 4, 4)), "s_waitcnt lgkmcnt(0)", "s_barrier",
                "s_cmp_lg_u32 s%d, 0" % S_ROLE, "s_cbranch_scc1 L_done",
                "ds_read_b128 %s, v%d offset:64" % (R(A + 12, 4), A + 8),
                "s_lshl_b32 s3, s3, 1", "v_mov_b32 v%d, s3" % (A + 9),
                "s_waitcnt lgkmcnt(0)",
                "v_min_f32 v%d, v%d, v%d" % (A, A + 4, A + 12),
                "v_sub_f32 v%d, v%d, v%d" % (A + 1, A, A + 4), "v_sub_f32 v%d, v%d, v%d" % (A + 2, A, A + 12),
                "v_exp_f32 v%d, v%d" % (A + 1, A + 1), "v_exp_f32 v%d, v%d" % (A + 2, A + 2), "s_nop 0",
                "v_mul_f32 v%d, v%d, v%d" % (A + 5, A + 5, A + 1), "v_mul_f32 v%d, v%d, v%d" % (A + 6, A + 6, A + 1),
                "v_fmac_f32 v%d, v%d, v%d" % (A + 5, A + 13, A + 2), "v_fmac_f32 v%d, v%d, v%d" % (A + 6, A + 14, A + 2),
                "v_rcp_f32 v%d, v%d" % (A + 5, A + 5), "s_nop 0", "v_mul_f32 v%d, v%d, v%d" % (A + 6, A + 6, A + 5),
                "v_cvt_pk_bf16_f32 v%d, v%d, v%d" % (A + 6, A + 6, A + 6),
                "global_store_short v%d, v%d, s[16:17]" % (A + 9, A + 6),
                "L_done:"]
        bad += hz.check(drain + fin, "fin")
        e(fin)
        if self.stamps:
            self.stamp()
            e("s_load_dwordx2 s[18:19], s[0:1], 80", "s_waitcnt lgkmcnt(0)",
              "s_lshl_b32 s%d, s2, 3" % S_T0, "s_add_u32 s%d, s%d, s%d" % (S_T0, S_T0, S_WAVE), "s_lshl_b32 s%d, s%d, 6" % (S_T0, S_T0),
              "v_mov_b32 v%d, s%d" % (A + 9, S_T0))
            for k in range(self.nst):
                e("v_mov_b32 v%d, s%d" % (A + 10, S_TS + 2 * k), "global_store_dword v%d, v%d, s[18:19] offset:%d" % (A + 9, A + 10, 4 * k))
        e("L_end:", "s_endpgm")
        bad += hz.check(self.L[:self.L.index("L_left:")], "prologue")
        e(self.cold)
        assert bad == 0, "hazards"

    def text(self):
        head = open("cdna_kernels/%s.s.ref" % NAME).read().split("; Override")[0]
        o = [head.rstrip(), "; Generated by gen/gen.py (hand-designed schedule, see comments there).",
             "; @launch grid=(256,1,1) block=(512,1,1) lds=%d" % LDS,
             '.amdgcn_target "amdgcn-amd-amdhsa--gfx950"', ".text", ".globl %s_kernel" % NAME, ".p2align 8",
             ".type %s_kernel,@function" % NAME, "%s_kernel:" % NAME]
        for l in self.L: o.append(l if l.endswith(":") or l.startswith(".") else "    " + l)
        o += ['.section .rodata,"a"', ".p2align 6", ".amdhsa_kernel %s_kernel" % NAME,
              "  .amdhsa_next_free_vgpr %d" % NV, "  .amdhsa_next_free_sgpr 102", "  .amdhsa_accum_offset %d" % NV,
              "  .amdhsa_group_segment_fixed_size 0", "  .amdhsa_kernarg_size 88", "  .amdhsa_user_sgpr_count 2",
              "  .amdhsa_user_sgpr_kernarg_segment_ptr 1", "  .amdhsa_system_sgpr_workgroup_id_x 1", ".end_amdhsa_kernel", ""]
        return "\n".join(o)

if __name__ == "__main__":
    stamps = "--stamps" in sys.argv
    out = [a for a in sys.argv[1:] if not a.startswith("--")]
    g = Gen(stamps); g.build()
    open(out[0] if out else "cdna_kernels/%s.s" % NAME, "w").write(g.text())
```

```python
import sys, struct
sys.path.insert(0, "gen")
import hz

NAME = "standalone__factorization_afm__recsys"
def f32(x): return "0x%08x" % struct.unpack("<I", struct.pack("<f", x))[0]
def R(b, n): return "v[%d:%d]" % (b, b + n - 1)
LOG2E = 1.4426950408889634

RB = 104; EG = 202; EP = 254; ZR = 410; NROW = 462
PS = NROW * 16
BS = 4 * PS
SCR = 4 * BS
RED = SCR + 512
LDS = RED + 128
BETA = 4

W = 8; BIAS = 24; V = 56; E = 88; T = 104; D = 120; P = 168; HA = 184; LA = 200; LD = 208; CI = 216
LAL, ACA, LBE, ACB = 224, 225, 226, 227
P0, P1, TT, TZ = 228, 229, 230, 231
AT1, AT2, AE, ALA = 232, 233, 234, 235
IDX = 236; LANE = 237; AX = 238; AY = 239; FLAG = 240; LBASE = 241
NV = 244
VS = V; VB = V + 16; ES = E; EB = E + 8; T1 = T; T2 = T + 8
S_WAVE, S_BL, S_ROLE, S_BB, S_CNT, S_THA, S_THB, S_TAU, S_SX, S_SY, S_T0, S_T1 = 20, 21, 22, 23, 24, 25, 26, 27, 28, 29, 30, 31
S_H = 48
S_TS = 64
THR_E = 40.0

class Gen:
    def __init__(self, stamps=False):
        self.L = []; self.cold = []; self.nrare = 0; self.stamps = stamps; self.nst = 0
    def e(self, *l):
        for x in l:
            if isinstance(x, (list, tuple)): self.e(*x)
            else: self.L.append(x)
    def stamp(self):
        if self.stamps:
            self.e("s_memrealtime s[%d:%d]" % (S_TS + 2 * self.nst, S_TS + 2 * self.nst + 1)); self.nst += 1

    jobs = [(VS, T1, 0, 0), (VB, T1, 0, 1), (VS, T1, 1, 0), (VB, T1, 1, 1), (VB, T2, 0, 1), (VB, T2, 1, 1)]
    def mf(self, a, t, h, d):
        return ["v_mfma_f32_32x32x16_f16 %s, %s, %s, %s" % (R(d, 16), R(a + 8 * h, 4), R(t, 4), R(BIAS + 16 * h, 16)),
                "v_mfma_f32_32x32x16_f16 %s, %s, %s, %s" % (R(d, 16), R(a + 8 * h + 4, 4), R(t + 4, 4), R(d, 16))]
    def cvt(self, d, pb):
        return ["v_cvt_pk_bf16_f32 v%d, |v%d|, |v%d|" % (pb + i, d + 2 * i, d + 2 * i + 1) for i in range(8)]
    def smf(self, dd, pos, h, pb):
        return "v_smfmac_f32_16x16x64_bf16 %s, %s, %s, v%d" % (R(dd, 4), R(HA + 8 * pos + 4 * h, 4), R(pb, 8), IDX)
    def vgen(self, v, e, h):
        return ["v_pk_mul_f16 v%d, v%d, v%d" % (v + 8 * h + i, W + 8 * h + i, e + i) for i in range(8)]
    def ls(self, dd, t, ci):
        return ["v_mfma_f32_16x16x32_f16 %s, %s, %s, %s" % (R(dd, 4), R(LA, 4), R(t, 4), R(ci, 4)),
                "v_mfma_f32_16x16x32_f16 %s, %s, %s, %s" % (R(dd, 4), R(LA + 4, 4), R(t + 4, 4), R(dd, 4))]
    def rd(self, r, a, off): return "ds_read_b128 %s, v%d offset:%d" % (R(r, 4), a, off)
    def rd2(self, r, a, off): return [self.rd(r, a, off), self.rd(r + 4, a, off + 2 * PS)]

    def rare(self, es, l, acc, cis, sthr, thr, tail):
        n = self.nrare; self.nrare += 1
        c = ["L_rare%d:" % n, "s_nop 7",
             "v_mov_b32 v%d, 0xff800000" % TZ,
             "v_cmp_eq_f32 vcc, 0, v%d" % l, "s_nop 1",
             "v_cndmask_b32 v%d, 0, v%d, vcc" % (TT, TZ)]
        for x in es: c.append("v_max_f32 v%d, v%d, v%d" % (TT, TT, x))
        c += ["v_cmp_eq_f32 vcc, v%d, v%d" % (TZ, TT), "s_nop 1",
              "v_cndmask_b32 v%d, v%d, 0, vcc" % (TT, TT)]
        for x in es: c.append("v_sub_f32 v%d, v%d, v%d" % (x, x, TT))
        for x in cis: c.append("v_sub_f32 v%d, v%d, v%d" % (x, x, TT))
        c += ["v_max_f32 v%d, 0, v%d" % (TT, TT), "v_exp_f32 v%d, -v%d" % (TT, TT), "s_nop 0",
              "v_mul_f32 v%d, v%d, v%d" % (l, l, TT), "v_mul_f32 v%d, v%d, v%d" % (acc, acc, TT),
              "s_mov_b32 s%d, %s" % (sthr, f32(thr))]
        c += tail + ["s_nop 1", "s_branch L_back%d" % n]
        self.cold += c
        return ["s_cbranch_vccnz L_rare%d" % n, "L_back%d:" % n]
    def soft_a(self):
        head = ["v_exp_f32 v%d, v%d" % (P0, LD), "v_exp_f32 v%d, v%d" % (P1, LD + 1)]
        add = "v_add_f32 v%d, v%d, v%d" % (TT, P0, P1)
        br = self.rare([LD, LD + 1], LAL, ACA, [CI, CI + 1], S_THA, 2.0 ** THR_E, head + ["s_nop 0", add])
        return head, [add, "v_cmp_nge_f32 vcc, s%d, v%d" % (S_THA, TT)], br, \
            ["v_add_f32 v%d, v%d, v%d" % (LAL, LAL, TT), "v_fmac_f32 v%d, v%d, v%d" % (ACA, P0, LD + 2), "v_fmac_f32 v%d, v%d, v%d" % (ACA, P1, LD + 3)]
    def soft_b(self):
        ex = "v_exp_f32 v%d, v%d" % (P0, LD + 5)
        br = self.rare([LD + 5], LBE, ACB, [CI + 5], S_THB, THR_E, [ex])
        return ["v_cmp_nge_f32 vcc, s%d, v%d" % (S_THB, LD + 5), ex], br, \
            ["v_add_f32 v%d, v%d, v%d" % (LBE, LBE, P0), "v_fmac_f32 v%d, v%d, v%d" % (ACB, P0, LD + 7)]

    def body(self, cur=True, prev=True):
        J = self.jobs
        def cv(k):
            kk = k % 6
            if (k < 0 and not prev) or (k >= 0 and not cur): return []
            return self.cvt(D + 16 * (kk % 3), P + 8 * (kk % 2))
        def sm(k):
            kk = k % 6
            if (k < 0 and not prev) or (k >= 0 and not cur): return []
            return [self.smf(LD + (4 if kk >= 4 else 0), J[kk][3], J[kk][2], P + 8 * (kk % 2))]
        vS0, vS1, vB0, vB1 = self.vgen(VS, ES, 0), self.vgen(VS, ES, 1), self.vgen(VB, EB, 0), self.vgen(VB, EB, 1)
        if not cur: vS0 = vS1 = vB0 = vB1 = []
        sa = sb = None
        if prev: sa = self.soft_a(); sb = self.soft_b()
        add = lambda a: ["v_add_u32 v%d, 32, v%d" % (a, a)] if cur else []
        out = []
        for k in range(6):
            m = self.mf(J[k][0], J[k][1], J[k][2], D + 16 * (k % 3)) if cur else [None, None]
            c = cv(k - 2); s = sm(k - 3)
            pre, mem, ins = [], [], list(s)
            if k == 0:
                pre = ["s_waitcnt lgkmcnt(0)"]; mem = self.rd2(LA, ALA, 0) + self.rd2(ES, AE, 32)
                l = c + vB0[4:] + vB1[:3] + add(ALA)
            elif k == 1:
                mem = self.rd2(T2, AT2, 0)
                if prev: l = c[:6] + sa[0] + c[6:] + sa[1] + vB1[3:5] + sa[2] + sa[3]
                else: l = vB1[3:5] + ["s_nop 1"]
                l = l + add(AT2)
            elif k == 2:
                pre = ["s_waitcnt lgkmcnt(2)"]
                l = c + vB1[5:] + vS0[:3]
                if cur: ins += self.ls(LD, T1, CI)
            elif k == 3:
                mem = self.rd2(EB, AE, 32 + RB * 16)
                if prev: l = c[:6] + sb[0] + c[6:] + vS0[3:5] + sb[1] + sb[2]
                else: l = c + vS0[3:5]
                l = l + add(AE)
            elif k == 4:
                pre = ["s_waitcnt lgkmcnt(2)"]; mem = self.rd2(T1, AT1, 32)
                l = c + vS0[5:] + vS1[:4] + add(AT1)
            else:
                l = c + vS1[4:] + ["s_waitcnt lgkmcnt(2)"] + vB0[:4]
                if cur: ins += self.ls(LD + 4, T2, CI + 4)
            if not cur:
                if k > 3: break
                out += ["s_nop 7"] + l + ["s_nop 1"] + ins
                continue
            out += pre + [m[0]] + mem
            def take(n):
                nonlocal l
                got = []; cost = 0
                while l and cost < n:
                    x = l.pop(0); got.append(x)
                    cost += 2 if x.startswith("v_exp") else (1 if x.startswith("v_") else 0)
                return got
            out += take(6) + [m[1]] + take(6)
            for x in ins:
                out += [x] + take(1 if "smfmac" in x else 2)
            out += l
        return out

    def build(self):
        e = self.e
        G0 = D
        IX = D + 16
        WL = D + 20
        X = D + 36
        WR = V
        BL = V + 16
        HL = V + 24
        PL = V + 28
        GV = E; PV = E + 4
        AW = E + 8
        M = T
        e("s_cmp_ge_u32 s2, 256", "s_cbranch_scc1 L_end")
        self.stamp()
        e("s_load_dwordx2 s[4:5], s[0:1], 0", "s_load_dwordx2 s[36:37], s[0:1], 8", "s_load_dwordx4 s[8:11], s[0:1], 32",
          "s_load_dwordx4 s[12:15], s[0:1], 48", "s_load_dwordx4 s[16:19], s[0:1], 64")
        e("v_lshrrev_b32 v1, 6, v0", "v_and_b32 v%d, 63, v0" % LANE,
          "v_readfirstlane_b32 s%d, v1" % S_WAVE,
          "v_and_b32 v2, 60, v0",
          "s_mov_b32 s6, 409600", "s_mov_b32 s7, 0x00020000", "s_mov_b32 s38, 6400000", "s_mov_b32 s39, 0x00020000",
          "s_and_b32 s%d, s%d, 3" % (S_BL, S_WAVE), "s_lshr_b32 s%d, s%d, 2" % (S_ROLE, S_WAVE),
          "s_lshl_b32 s3, s2, 2", "s_add_u32 s3, s3, s%d" % S_BL,
          "s_mul_i32 s%d, s3, 400" % S_T0, "s_mul_i32 s%d, s%d, 208" % (S_T1, S_ROLE), "s_add_u32 s%d, s%d, s%d" % (S_T0, S_T0, S_T1),
          "v_add_u32 v2, s%d, v2" % S_T0)
        e("v_lshrrev_b32 v3, 5, v%d" % LANE,
          "v_and_b32 v4, 1, v%d" % LANE, "v_bfe_u32 v5, v%d, 2, 3" % LANE, "v_lshl_add_u32 v4, v5, 1, v4",
          "v_lshlrev_b32 v4, 2, v4", "v_lshl_add_u32 v4, v3, 9, v4",
          "s_waitcnt lgkmcnt(0)")
        for i in range(4): e("buffer_load_dword v%d, v2, s[4:7], 0 offen offset:%d" % (IX + i, 64 * i))
        e("s_load_dwordx16 s[%d:%d], s[12:13], 0" % (S_H, S_H + 15))
        for ks in range(2):
            for jj in range(8): e("global_load_dword v%d, v4, s[8:9] offset:%d" % (WL + 8 * ks + jj, 1024 * ks + 64 * jj))
        e("v_and_b32 v5, 31, v%d" % LANE, "v_lshlrev_b32 v5, 6, v5",
          "v_lshlrev_b32 v6, 3, v3",
          "v_bfe_u32 v7, v%d, 4, 1" % LANE, "v_lshlrev_b32 v7, 3, v7", "v_lshl_add_u32 v7, v3, 5, v7",
          "v_and_b32 v1, 3, v%d" % LANE, "v_lshlrev_b32 v1, 4, v1")
        for c in range(4): e("global_load_dwordx4 %s, v5, s[8:9] offset:%d" % (R(WR + 4 * c, 4), 16 * c))
        for u in range(4): e("global_load_dwordx2 %s, v6, s[10:11] offset:%d" % (R(BL + 2 * u, 2), 16 * u))
        for t in range(2): e("global_load_dwordx2 %s, v7, s[12:13] offset:%d" % (R(HL + 2 * t, 2), 16 * t))
        e("global_load_dwordx4 %s, v1, s[14:15]" % R(PL, 4))
        e("s_lshl_b32 s%d, s%d, 30" % (S_T0, S_ROLE), "v_cmp_lt_u32 vcc, 15, v%d" % LANE, "v_mov_b32 v%d, 0x40000000" % X,
          "s_mul_i32 s%d, s%d, %d" % (S_BB, S_BL, BS),
          "v_cndmask_b32 v%d, 0, v%d, vcc" % (X, X), "v_or_b32 v%d, s%d, v%d" % (X, S_T0, X), "v_or_b32 v%d, v%d, v1" % (X, X))
        e("s_waitcnt vmcnt(27)")
        self.stamp()
        for i in range(4):
            e("v_lshl_or_b32 v%d, v%d, 6, v%d" % (IX + i, IX + i, X if i == 3 else 1))
            e("buffer_load_dwordx4 %s, v%d, s[36:39], 0 offen" % (R(G0 + 4 * i, 4), IX + i))
        e("s_mul_i32 s%d, s%d, %d" % (S_T0, S_ROLE, 13 * 32), "s_add_u32 s%d, s%d, s%d" % (S_T0, S_T0, S_BB),
          "v_mul_u32_u24 v2, %d, v3" % PS,
          "v_and_b32 v5, 31, v%d" % LANE,
          "v_cmp_lt_u32 vcc, 23, v5", "v_add_u32 v6, 2, v5", "v_add_u32 v7, 82, v5",
          "v_cndmask_b32 v6, v6, v7, vcc", "v_lshl_add_u32 v6, v6, 4, v2", "v_add_u32 v%d, s%d, v6" % (AT1, S_T0),
          "v_cmp_lt_u32 vcc, 15, v5", "v_add_u32 v6, 26, v5", "v_xor_b32 v7, 24, v5", "v_add_u32 v7, 114, v7",
          "v_cndmask_b32 v6, v6, v7, vcc", "v_lshl_add_u32 v6, v6, 4, v2", "v_add_u32 v%d, s%d, v6" % (AT2, S_T0),
          "v_bfe_u32 v6, v%d, 1, 1" % LANE, "v_lshl_add_u32 v6, v6, 4, v2", "v_add_u32 v%d, s%d, v6" % (AE, S_T0),
          "v_bfe_u32 v6, v%d, 1, 1" % LANE, "v_mul_u32_u24 v6, 52, v6", "v_and_b32 v7, 1, v%d" % LANE, "v_mul_u32_u24 v7, 104, v7",
          "v_add_u32 v6, v6, v7", "v_bfe_u32 v7, v%d, 3, 1" % LANE, "v_add_u32 v6, v6, v7", "v_add_u32 v6, %d, v6" % EG,
          "v_lshl_add_u32 v6, v6, 4, v2",
          "v_bfe_u32 v7, v%d, 2, 1" % LANE, "v_bfe_u32 v%d, v%d, 4, 1" % (X + 1, LANE), "v_cmp_eq_u32 vcc, v7, v%d" % (X + 1),
          "v_mov_b32 v7, %d" % (ZR * 16), "s_nop 0", "v_cndmask_b32 v6, v7, v6, vcc", "v_add_u32 v%d, s%d, v6" % (ALA, S_T0),
          "v_cmp_gt_u32 vcc, 25, v5", "v_lshlrev_b32 v6, 5, v5", "v_subrev_u32 v7, 25, v5", "v_mul_u32_u24 v7, 160, v7", "v_add_u32 v7, %d, v7" % (RB * 16),
          "v_cndmask_b32 v6, v7, v6, vcc", "v_add3_u32 v%d, v6, v2, s%d" % (LBASE, S_BB), "v_cndmask_b32 v%d, 0, 1, vcc" % FLAG,
          "v_and_b32 v6, 3, v%d" % LANE, "v_mul_u32_u24 v6, %d, v6" % PS, "v_bfe_u32 v7, v%d, 3, 1" % LANE, "v_mul_u32_u24 v7, %d, v7" % (RB * 16),
          "v_add_u32 v6, v6, v7", "v_lshrrev_b32 v7, 4, v%d" % LANE, "v_lshl_add_u32 v6, v7, 5, v6", "v_bfe_u32 v7, v%d, 2, 1" % LANE,
          "v_lshl_add_u32 v6, v7, 4, v6", "v_add_u32 v%d, s%d, v6" % (AW, S_T0),
          "v_bfe_u32 v6, v%d, 3, 1" % LANE, "v_mul_u32_u24 v6, 0xaaaa, v6", "v_add_u32 v%d, 0x4444, v6" % IDX)
        e("s_mul_i32 s%d, s%d, %d" % (S_T1, S_ROLE, 2 * PS), "s_add_u32 s%d, s%d, s%d" % (S_T1, S_T1, S_BB),
          "v_min_u32 v6, 51, v%d" % LANE, "v_lshlrev_b32 v6, 4, v6", "v_add_u32 v6, s%d, v6" % S_T1)
        for j in range(8): e("v_mov_b32 v%d, 0" % (CI + j))
        for j in range(4): e("v_mov_b32 v%d, 0" % (LAL + j))
        e("ds_write_b128 v6, %s offset:%d" % (R(CI, 4), ZR * 16))
        e("v_and_b32 v6, 7, v%d" % LANE)
        for pos in range(2):
            for c in range(2):
                e("v_cmp_eq_u32 vcc, %d, v6" % (4 * c + pos), "s_nop 1", "v_cndmask_b32 v%d, 0, -1, vcc" % (M + 2 * pos + c))
        e("s_mov_b32 s%d, %s" % (S_THA, f32(-1.0)), "s_mov_b32 s%d, 0xff800000" % S_THB)
        e("s_mov_b32 s40, %s" % f32(LOG2E * 2 ** BETA), "s_mov_b32 s41, %s" % f32(2.0 ** -(BETA + 1)), "s_mov_b32 s42, %s" % f32(0.5 * LOG2E),
          "s_mov_b32 s43, 0xffff0000")
        e("s_waitcnt vmcnt(4) lgkmcnt(0)")
        self.stamp()
        e("v_mov_b32 v%d, 0" % X)
        for j in range(16): e("v_dot2_f32_bf16 v%d, v%d, s%d, v%d" % (X, WR + j, S_H + j, X))
        e("s_lshl_b32 s%d, s%d, 6" % (S_T1, S_WAVE), "s_add_u32 s%d, s%d, %d" % (S_T1, S_T1, SCR),
          "v_lshlrev_b32 v6, 1, v5", "v_add_u32 v6, s%d, v6" % S_T1, "v_add_u32 v7, s%d, v1" % S_T1,
          "v_mul_f32 v%d, s42, v%d" % (X, X), "v_cvt_f16_f32 v%d, v%d" % (X, X), "ds_write_b16 v6, v%d" % X,
          "ds_read_b128 %s, v7" % R(GV, 4))
        for ks in range(2):
            for t in range(4):
                a, b = WL + 8 * ks + 2 * t, WL + 8 * ks + 2 * t + 1
                e("v_lshlrev_b32 v%d, 16, v%d" % (X, a), "v_lshlrev_b32 v%d, 16, v%d" % (X + 1, b),
                  "v_and_b32 v%d, s43, v%d" % (X + 2, a), "v_and_b32 v%d, s43, v%d" % (X + 3, b))
                for j in range(4): e("v_mul_f32 v%d, s40, v%d" % (X + j, X + j))
                e("v_cvt_pk_f16_f32 v%d, v%d, v%d" % (W + 4 * ks + t, X, X + 1), "v_cvt_pk_f16_f32 v%d, v%d, v%d" % (W + 8 + 4 * ks + t, X + 2, X + 3))
        for u in range(4):
            for b0 in range(2):
                src = BL + 2 * u + b0
                e("v_lshlrev_b32 v%d, 16, v%d" % (X, src), "v_and_b32 v%d, s43, v%d" % (X + 1, src))
                for x in range(2):
                    for nd in range(2): e("v_mul_f32 v%d, s40, v%d" % (BIAS + 16 * x + 4 * u + 2 * nd + b0, X + x))
        for t1 in range(2):
            a, b = HL + 2 * t1, HL + 2 * t1 + 1
            e("v_lshlrev_b32 v%d, 16, v%d" % (X, a), "v_lshlrev_b32 v%d, 16, v%d" % (X + 1, b),
              "v_and_b32 v%d, s43, v%d" % (X + 2, a), "v_and_b32 v%d, s43, v%d" % (X + 3, b))
            for j in range(4): e("v_mul_f32 v%d, s41, v%d" % (X + j, X + j))
            e("v_cvt_pk_bf16_f32 v%d, v%d, v%d" % (X + 4, X, X + 1), "v_cvt_pk_bf16_f32 v%d, v%d, v%d" % (X + 5, X + 2, X + 3))
            for pos in range(2):
                for x in range(2):
                    for c in range(2):
                        e("v_and_b32 v%d, v%d, v%d" % (HA + 8 * pos + 4 * x + 2 * c + t1, X + 4 + x, M + 2 * pos + c))
        for j in range(4):
            e("v_lshlrev_b32 v%d, 16, v%d" % (X, PL + j), "v_and_b32 v%d, s43, v%d" % (X + 1, PL + j),
              "v_cvt_pk_f16_f32 v%d, v%d, v%d" % (PV + j, X, X + 1))
        e("s_mul_i32 s44, s%d, 0x3f803f80" % S_ROLE)
        e("s_waitcnt lgkmcnt(0)")
        self.stamp()
        for i in range(4):
            g = G0 + 4 * i
            e("s_waitcnt vmcnt(%d)" % (3 - i))
            if i == 0: self.stamp()
            if i == 3:
                for j in range(4): e("v_or_b32 v%d, s44, v%d" % (g + j, g + j))
                e("s_mov_b64 exec, 0xffff")
            for j in range(4):
                e("v_lshlrev_b32 v%d, 16, v%d" % (X, g + j), "v_and_b32 v%d, s43, v%d" % (X + 1, g + j),
                  "v_cvt_pk_f16_f32 v%d, v%d, v%d" % (g + j, X, X + 1))
            w1 = "ds_write_b128 v%d, %s offset:%d" % (AW, R(g, 4), 128 * i)
            w2 = "ds_write_b128 v%d, %s offset:%d" % (AW, R(g, 4), 128 * i + 800)
            if i < 2: e(w1, w2)
            elif i == 2: e(w1, "s_cmp_lg_u32 s%d, 0" % S_ROLE, "s_cbranch_scc1 L_nodup2", w2, "L_nodup2:")
            else: e("s_cbranch_scc1 L_nodup3", w1, w2, "L_nodup3:")
            a, b = V + 8 * i, V + 8 * i + 4
            for j in range(4): e("v_pk_mul_f16 v%d, v%d, v%d" % (a + j, g + j, GV + j))
            e("ds_write_b128 v%d, %s offset:%d" % (AW, R(a, 4), 128 * i + EG * 16))
            for j in range(4): e("v_pk_mul_f16 v%d, v%d, v%d" % (b + j, g + j, PV + j))
            e("ds_write_b128 v%d, %s offset:%d" % (AW, R(b, 4), 128 * i + EP * 16))
        e("s_mov_b64 exec, -1", "s_waitcnt lgkmcnt(0)")
        self.stamp()
        e("s_barrier")
        self.stamp()
        e("s_mul_i32 s%d, s%d, %d" % (S_T0, S_ROLE, 13 * 32), "s_sub_u32 s%d, %d, s%d" % (S_T0, 25 * 32, S_T0),
          "v_add_u32 v%d, s%d, v%d" % (AX, S_T0, ALA))
        e(self.rd2(LA, AX, 0))
        e("s_cmp_eq_u32 s%d, 0" % S_ROLE, "s_cselect_b32 s%d, 4, 0" % S_TAU, "s_cselect_b32 s%d, 5, 4" % S_CNT)
        lo = ["L_left:",
              "s_lshr_b32 s%d, s%d, 1" % (S_SX, S_TAU), "s_and_b32 s%d, s%d, 1" % (S_SY, S_TAU), "s_add_u32 s%d, s%d, %d" % (S_SY, S_SY, RB),
              "s_cmp_eq_u32 s%d, 4" % S_TAU, "s_cselect_b32 s%d, 0, s%d" % (S_SX, S_SX), "s_cselect_b32 s%d, 1, s%d" % (S_SY, S_SY),
              "s_lshl_b32 s%d, s%d, 5" % (S_T0, S_TAU),
              "s_lshl_b32 s%d, s%d, 4" % (S_SX, S_SX), "s_lshl_b32 s%d, s%d, 4" % (S_SY, S_SY),
              "s_sub_i32 s%d, s%d, s%d" % (S_SX, S_SX, S_T0), "s_sub_i32 s%d, s%d, s%d" % (S_SY, S_SY, S_T0), "s_sub_i32 s%d, s%d, 16" % (S_SY, S_SY),
              "v_add_u32 v%d, s%d, v%d" % (TT, S_T0, LBASE),
              "v_mad_i32_i24 v%d, v%d, s%d, v%d" % (AX, FLAG, S_SX, TT), "v_mad_i32_i24 v%d, v%d, s%d, v%d" % (AY, FLAG, S_SY, TT)]
        lo += self.rd2(ES, AX, 0) + self.rd2(EB, AY, 16) + ["s_waitcnt lgkmcnt(0)"]
        lo += ["v_pk_mul_f16 v%d, v%d, v%d" % (T2 + i, ES + i, EB + i) for i in range(8)] + ["s_nop 1"]
        m0 = self.mf(W, T2, 0, D); m1 = self.mf(W, T2, 1, D + 16)
        lo += m0 + m1 + self.ls(LD + 4, T2, CI + 4) + ["s_nop 7"] + self.cvt(D, P) + self.cvt(D + 16, P + 8)
        lo += [self.smf(LD + 4, 1, 0, P), "s_nop 0", self.smf(LD + 4, 1, 1, P + 8), "s_mov_b64 exec, 0x3fffffff", "s_nop 6"]
        sb = self.soft_b()
        lo += sb[0] + sb[1] + sb[2] + ["s_mov_b64 exec, -1",
              "s_add_u32 s%d, s%d, 1" % (S_TAU, S_TAU), "s_cmp_lt_u32 s%d, s%d" % (S_TAU, S_CNT), "s_cbranch_scc1 L_left"]
        e(lo)
        self.stamp()
        e("s_mov_b32 s%d, 0xff800000" % S_THB)
        pre = self.rd2(ES, AE, 0) + self.rd2(EB, AE, RB * 16) + self.rd2(T1, AT1, 0) + ["s_sub_u32 s%d, 12, s%d" % (S_CNT, S_ROLE), "s_waitcnt lgkmcnt(2)"]
        pre += self.vgen(VS, ES, 0) + self.vgen(VS, ES, 1) + self.vgen(VB, EB, 0)[:4]
        first = self.body(prev=False)
        loop = self.body()
        drain = self.body(cur=False)
        e(pre, first, ".p2align 6" if False else [], "L_loop:", loop,
          "s_sub_u32 s%d, s%d, 1" % (S_CNT, S_CNT), "s_cmp_lg_u32 s%d, 0" % S_CNT, "s_cbranch_scc1 L_loop", drain)
        bad = hz.check(lo + lo, "left") + hz.check(lo + pre + first + loop + ["s_nop 2"] + loop + ["s_nop 2"] + drain, "main")
        self.stamp()
        A = D
        fin = ["v_min_f32 v%d, v%d, v%d" % (A, CI, CI + 5)]
        def red(op, regs_):
            o = []
            for mod in ("row_shr:1", "row_shr:2", "row_shr:4", "row_shr:8", "row_bcast:15 row_mask:0xa", "row_bcast:31 row_mask:0xc"):
                o.append("s_nop %d" % (1 if len(regs_) == 1 else 0))
                for r in regs_:
                    mm = mod if "row_mask" in mod else mod + " row_mask:0xf"
                    o.append("%s_dpp v%d, v%d, v%d %s bank_mask:0xf" % (op, r, r, r, mm))
            return o
        fin += red("v_min_f32", [A]) + ["s_nop 0", "v_readlane_b32 s%d, v%d, 63" % (S_T0, A), "s_nop 1",
               "v_sub_f32 v%d, s%d, v%d" % (A + 1, S_T0, CI), "v_sub_f32 v%d, s%d, v%d" % (A + 2, S_T0, CI + 5),
               "v_exp_f32 v%d, v%d" % (A + 1, A + 1), "v_exp_f32 v%d, v%d" % (A + 2, A + 2), "v_mov_b32 v%d, s%d" % (A + 4, S_T0),
               "v_mul_f32 v%d, v%d, v%d" % (A + 5, LAL, A + 1), "v_mul_f32 v%d, v%d, v%d" % (A + 6, ACA, A + 1),
               "v_fmac_f32 v%d, v%d, v%d" % (A + 5, LBE, A + 2), "v_fmac_f32 v%d, v%d, v%d" % (A + 6, ACB, A + 2)]
        fin += red("v_add_f32", [A + 5, A + 6])
        fin += ["s_lshl_b32 s%d, s%d, 4" % (S_T1, S_WAVE), "s_add_u32 s%d, s%d, %d" % (S_T1, S_T1, RED), "v_mov_b32 v%d, s%d" % (A + 8, S_T1),
                "s_mov_b32 exec_lo, 0", "s_mov_b32 exec_hi, 0x80000000",
                "ds_write_b128 v%d, %s" % (A + 8, R(A + 4, 4)), "s_waitcnt lgkmcnt(0)", "s_barrier",
                "s_cmp_lg_u32 s%d, 0" % S_ROLE, "s_cbranch_scc1 L_done",
                "ds_read_b128 %s, v%d offset:64" % (R(A + 12, 4), A + 8),
                "s_lshl_b32 s3, s3, 1", "v_mov_b32 v%d, s3" % (A + 9),
                "s_waitcnt lgkmcnt(0)",
                "v_min_f32 v%d, v%d, v%d" % (A, A + 4, A + 12),
                "v_sub_f32 v%d, v%d, v%d" % (A + 1, A, A + 4), "v_sub_f32 v%d, v%d, v%d" % (A + 2, A, A + 12),
                "v_exp_f32 v%d, v%d" % (A + 1, A + 1), "v_exp_f32 v%d, v%d" % (A + 2, A + 2), "s_nop 0",
                "v_mul_f32 v%d, v%d, v%d" % (A + 5, A + 5, A + 1), "v_mul_f32 v%d, v%d, v%d" % (A + 6, A + 6, A + 1),
                "v_fmac_f32 v%d, v%d, v%d" % (A + 5, A + 13, A + 2), "v_fmac_f32 v%d, v%d, v%d" % (A + 6, A + 14, A + 2),
                "v_rcp_f32 v%d, v%d" % (A + 5, A + 5), "s_nop 0", "v_mul_f32 v%d, v%d, v%d" % (A + 6, A + 6, A + 5),
                "v_cvt_pk_bf16_f32 v%d, v%d, v%d" % (A + 6, A + 6, A + 6),
                "global_store_short v%d, v%d, s[16:17]" % (A + 9, A + 6),
                "L_done:"]
        bad += hz.check(drain + fin, "fin")
        e(fin)
        if self.stamps == "dbg":
            self.stamp()
            e("s_waitcnt lgkmcnt(0)", "v_mov_b32 v%d, 0" % (A + 9), "s_not_b32 s%d, s%d" % (S_T0, S_TS), "v_mov_b32 v%d, s%d" % (A + 10, S_T0),
              "global_atomic_umax v%d, v%d, s[18:19]" % (A + 9, A + 10))
            for k in range(self.nst):
                e("v_mov_b32 v%d, s%d" % (A + 11 + k, S_TS + 2 * k), "global_atomic_umax v%d, v%d, s[18:19] offset:%d" % (A + 9, A + 11 + k, 4 * k + 4))
        elif self.stamps:
            self.stamp()
            e("s_load_dwordx2 s[18:19], s[0:1], 80", "s_waitcnt lgkmcnt(0)",
              "s_lshl_b32 s%d, s2, 3" % S_T0, "s_add_u32 s%d, s%d, s%d" % (S_T0, S_T0, S_WAVE), "s_lshl_b32 s%d, s%d, 6" % (S_T0, S_T0),
              "v_mov_b32 v%d, s%d" % (A + 9, S_T0))
            for k in range(self.nst):
                e("v_mov_b32 v%d, s%d" % (A + 10, S_TS + 2 * k), "global_store_dword v%d, v%d, s[18:19] offset:%d" % (A + 9, A + 10, 4 * k))
        e("L_end:", "s_endpgm")
        bad += hz.check(self.L[:self.L.index("L_left:")], "prologue")
        e(self.cold)
        assert bad == 0, "hazards"

    def text(self):
        head = open("cdna_kernels/%s.s.ref" % NAME).read().split("; Override")[0]
        o = [head.rstrip(), "; Generated by gen/gen.py (hand-designed schedule, see comments there).",
             "; @launch grid=(256,1,1) block=(512,1,1) lds=%d" % LDS,
             '.amdgcn_target "amdgcn-amd-amdhsa--gfx950"', ".text", ".globl %s_kernel" % NAME, ".p2align 8",
             ".type %s_kernel,@function" % NAME, "%s_kernel:" % NAME]
        for l in self.L: o.append(l if l.endswith(":") or l.startswith(".") else "    " + l)
        o += ['.section .rodata,"a"', ".p2align 6", ".amdhsa_kernel %s_kernel" % NAME,
              "  .amdhsa_next_free_vgpr %d" % NV, "  .amdhsa_next_free_sgpr 102", "  .amdhsa_accum_offset %d" % NV,
              "  .amdhsa_group_segment_fixed_size 0", "  .amdhsa_kernarg_size 88", "  .amdhsa_user_sgpr_count 2",
              "  .amdhsa_user_sgpr_kernarg_segment_ptr 1", "  .amdhsa_system_sgpr_workgroup_id_x 1", ".end_amdhsa_kernel", ""]
        return "\n".join(o)

if __name__ == "__main__":
    stamps = "dbg" if "--dbg" in sys.argv else ("--stamps" in sys.argv)
    out = [a for a in sys.argv[1:] if not a.startswith("--")]
    g = Gen(stamps); g.build()
    open(out[0] if out else "cdna_kernels/%s.s" % NAME, "w").write(g.text())
```

```python
import sys, struct
sys.path.insert(0, "gen")
import hz

NAME = "standalone__factorization_afm__recsys"
def f32(x): return "0x%08x" % struct.unpack("<I", struct.pack("<f", x))[0]
def R(b, n): return "v[%d:%d]" % (b, b + n - 1)
LOG2E = 1.4426950408889634

RB = 104; EG = 202; EP = 254; ZR = 410; NROW = 462
PS = NROW * 16
BS = 4 * PS
SCR = 4 * BS
RED = SCR + 512
LDS = RED + 128
BETA = 4

W = 8; BIAS = 24; V = 56; E = 88; T = 104; D = 120; P = 168; HA = 184; LA = 200; LD = 208; CI = 216
LAL, ACA, LBE, ACB = 224, 225, 226, 227
P0, P1, TT, TZ = 228, 229, 230, 231
AT1, AT2, AE, ALA = 232, 233, 234, 235
IDX = 236; LANE = 237; AX = 238; AY = 239; FLAG = 240; LBASE = 241
NV = 244
VS = V; VB = V + 16; ES = E; EB = E + 8; T1 = T; T2 = T + 8
S_WAVE, S_BL, S_ROLE, S_BB, S_CNT, S_THA, S_THB, S_TAU, S_SX, S_SY, S_T0, S_T1 = 20, 21, 22, 23, 24, 25, 26, 27, 28, 29, 30, 31
S_H = 48
S_TS = 64
THR_E = 40.0

class Gen:
    def __init__(self, stamps=False):
        self.L = []; self.cold = []; self.nrare = 0; self.stamps = stamps; self.nst = 0
    def e(self, *l):
        for x in l:
            if isinstance(x, (list, tuple)): self.e(*x)
            else: self.L.append(x)
    def stamp(self):
        if self.stamps:
            self.e("s_memrealtime s[%d:%d]" % (S_TS + 2 * self.nst, S_TS + 2 * self.nst + 1)); self.nst += 1

    jobs = [(VS, T1, 0, 0), (VB, T1, 0, 1), (VS, T1, 1, 0), (VB, T1, 1, 1), (VB, T2, 0, 1), (VB, T2, 1, 1)]
    def mf(self, a, t, h, d):
        return ["v_mfma_f32_32x32x16_f16 %s, %s, %s, %s" % (R(d, 16), R(a + 8 * h, 4), R(t, 4), R(BIAS + 16 * h, 16)),
                "v_mfma_f32_32x32x16_f16 %s, %s, %s, %s" % (R(d, 16), R(a + 8 * h + 4, 4), R(t + 4, 4), R(d, 16))]
    def cvt(self, d, pb):
        return ["v_cvt_pk_bf16_f32 v%d, |v%d|, |v%d|" % (pb + i, d + 2 * i, d + 2 * i + 1) for i in range(8)]
    def smf(self, dd, pos, h, pb):
        return "v_smfmac_f32_16x16x64_bf16 %s, %s, %s, v%d" % (R(dd, 4), R(HA + 8 * pos + 4 * h, 4), R(pb, 8), IDX)
    def vgen(self, v, e, h):
        return ["v_pk_mul_f16 v%d, v%d, v%d" % (v + 8 * h + i, W + 8 * h + i, e + i) for i in range(8)]
    def ls(self, dd, t, ci):
        return ["v_mfma_f32_16x16x32_f16 %s, %s, %s, %s" % (R(dd, 4), R(LA, 4), R(t, 4), R(ci, 4)),
                "v_mfma_f32_16x16x32_f16 %s, %s, %s, %s" % (R(dd, 4), R(LA + 4, 4), R(t + 4, 4), R(dd, 4))]
    def rd(self, r, a, off): return "ds_read_b128 %s, v%d offset:%d" % (R(r, 4), a, off)
    def rd2(self, r, a, off): return [self.rd(r, a, off), self.rd(r + 4, a, off + 2 * PS)]

    def rare(self, es, l, acc, cis, sthr, thr, tail):
        n = self.nrare; self.nrare += 1
        c = ["L_rare%d:" % n, "s_nop 7",
             "v_mov_b32 v%d, 0xff800000" % TZ,
             "v_cmp_eq_f32 vcc, 0, v%d" % l, "s_nop 1",
             "v_cndmask_b32 v%d, 0, v%d, vcc" % (TT, TZ)]
        for x in es: c.append("v_max_f32 v%d, v%d, v%d" % (TT, TT, x))
        c += ["v_cmp_eq_f32 vcc, v%d, v%d" % (TZ, TT), "s_nop 1",
              "v_cndmask_b32 v%d, v%d, 0, vcc" % (TT, TT)]
        for x in es: c.append("v_sub_f32 v%d, v%d, v%d" % (x, x, TT))
        for x in cis: c.append("v_sub_f32 v%d, v%d, v%d" % (x, x, TT))
        c += ["v_max_f32 v%d, 0, v%d" % (TT, TT), "v_exp_f32 v%d, -v%d" % (TT, TT), "s_nop 0",
              "v_mul_f32 v%d, v%d, v%d" % (l, l, TT), "v_mul_f32 v%d, v%d, v%d" % (acc, acc, TT),
              "s_mov_b32 s%d, %s" % (sthr, f32(thr))]
        c += tail + ["s_nop 1", "s_branch L_back%d" % n]
        self.cold += c
        return ["s_cbranch_vccnz L_rare%d" % n, "L_back%d:" % n]
    def soft_a(self):
        head = ["v_exp_f32 v%d, v%d" % (P0, LD), "v_exp_f32 v%d, v%d" % (P1, LD + 1)]
        add = "v_add_f32 v%d, v%d, v%d" % (TT, P0, P1)
        br = self.rare([LD, LD + 1], LAL, ACA, [CI, CI + 1], S_THA, 2.0 ** THR_E, head + ["s_nop 0", add])
        return head, [add, "v_cmp_nge_f32 vcc, s%d, v%d" % (S_THA, TT)], br, \
            ["v_add_f32 v%d, v%d, v%d" % (LAL, LAL, TT), "v_fmac_f32 v%d, v%d, v%d" % (ACA, P0, LD + 2), "v_fmac_f32 v%d, v%d, v%d" % (ACA, P1, LD + 3)]
    def soft_b(self):
        ex = "v_exp_f32 v%d, v%d" % (P0, LD + 5)
        br = self.rare([LD + 5], LBE, ACB, [CI + 5], S_THB, THR_E, [ex])
        return ["v_cmp_nge_f32 vcc, s%d, v%d" % (S_THB, LD + 5), ex], br, \
            ["v_add_f32 v%d, v%d, v%d" % (LBE, LBE, P0), "v_fmac_f32 v%d, v%d, v%d" % (ACB, P0, LD + 7)]

    def body(self, cur=True, prev=True):
        J = self.jobs
        def cv(k):
            kk = k % 6
            if (k < 0 and not prev) or (k >= 0 and not cur): return []
            return self.cvt(D + 16 * (kk % 3), P + 8 * (kk % 2))
        def sm(k):
            kk = k % 6
            if (k < 0 and not prev) or (k >= 0 and not cur): return []
            return [self.smf(LD + (4 if kk >= 4 else 0), J[kk][3], J[kk][2], P + 8 * (kk % 2))]
        vS0, vS1, vB0, vB1 = self.vgen(VS, ES, 0), self.vgen(VS, ES, 1), self.vgen(VB, EB, 0), self.vgen(VB, EB, 1)
        if not cur: vS0 = vS1 = vB0 = vB1 = []
        sa = sb = None
        if prev: sa = self.soft_a(); sb = self.soft_b()
        add = lambda a: ["v_add_u32 v%d, 32, v%d" % (a, a)] if cur else []
        out = []
        for k in range(6):
            m = self.mf(J[k][0], J[k][1], J[k][2], D + 16 * (k % 3)) if cur else [None, None]
            c = cv(k - 2); s = sm(k - 3)
            pre, mem, ins = [], [], list(s)
            if k == 0:
                pre = ["s_waitcnt lgkmcnt(0)"]; mem = self.rd2(LA, ALA, 0) + self.rd2(ES, AE, 32)
                l = c + vB0[4:] + vB1[:3] + add(ALA)
            elif k == 1:
                mem = self.rd2(T2, AT2, 0)
                if prev: l = c[:6] + sa[0] + c[6:] + sa[1] + vB1[3:5] + sa[2] + sa[3]
                else: l = vB1[3:5] + ["s_nop 1"]
                l = l + add(AT2)
            elif k == 2:
                pre = ["s_waitcnt lgkmcnt(2)"]
                l = c + vB1[5:] + vS0[:3]
                if cur: ins += self.ls(LD, T1, CI)
            elif k == 3:
                mem = self.rd2(EB, AE, 32 + RB * 16)
                if prev: l = c[:6] + sb[0] + c[6:] + vS0[3:5] + sb[1] + sb[2]
                else: l = c + vS0[3:5]
                l = l + add(AE)
            elif k == 4:
                pre = ["s_waitcnt lgkmcnt(2)"]; mem = self.rd2(T1, AT1, 32)
                l = c + vS0[5:] + vS1[:4] + add(AT1)
            else:
                l = c + vS1[4:] + ["s_waitcnt lgkmcnt(2)"] + vB0[:4]
                if cur: ins += self.ls(LD + 4, T2, CI + 4)
            if not cur:
                if k > 3: break
                out += ["s_nop 7"] + l + ["s_nop 1"] + ins
                continue
            out += pre + [m[0]] + mem
            def take(n):
                nonlocal l
                got = []; cost = 0
                while l and cost < n:
                    x = l.pop(0); got.append(x)
                    cost += 2 if x.startswith("v_exp") else (1 if x.startswith("v_") else 0)
                return got
            out += take(6) + [m[1]] + take(6)
            for x in ins:
                out += [x] + take(1 if "smfmac" in x else 2)
            out += l
        return out

    def build(self):
        e = self.e
        G0 = D
        IX = D + 16
        WL = D + 20
        X = D + 36
        WR = V
        BL = V + 16
        HL = V + 24
        PL = V + 28
        GV = E; PV = E + 4
        AW = E + 8
        M = T
        e("s_cmp_ge_u32 s2, 256", "s_cbranch_scc1 L_end")
        self.stamp()
        e("s_load_dwordx2 s[4:5], s[0:1], 0", "s_load_dwordx2 s[36:37], s[0:1], 8", "s_load_dwordx4 s[8:11], s[0:1], 32",
          "s_load_dwordx4 s[12:15], s[0:1], 48", "s_load_dwordx4 s[16:19], s[0:1], 64")
        e("v_lshrrev_b32 v1, 6, v0", "v_and_b32 v%d, 63, v0" % LANE,
          "v_readfirstlane_b32 s%d, v1" % S_WAVE,
          "v_and_b32 v2, 60, v0",
          "s_mov_b32 s6, 409600", "s_mov_b32 s7, 0x00020000", "s_mov_b32 s38, 6400000", "s_mov_b32 s39, 0x00020000",
          "s_and_b32 s%d, s%d, 3" % (S_BL, S_WAVE), "s_lshr_b32 s%d, s%d, 2" % (S_ROLE, S_WAVE),
          "s_lshl_b32 s3, s2, 2", "s_add_u32 s3, s3, s%d" % S_BL,
          "s_mul_i32 s%d, s3, 400" % S_T0, "s_mul_i32 s%d, s%d, 208" % (S_T1, S_ROLE), "s_add_u32 s%d, s%d, s%d" % (S_T0, S_T0, S_T1),
          "v_add_u32 v2, s%d, v2" % S_T0)
        e("v_lshrrev_b32 v3, 5, v%d" % LANE,
          "v_and_b32 v4, 1, v%d" % LANE, "v_bfe_u32 v5, v%d, 2, 3" % LANE, "v_lshl_add_u32 v4, v5, 1, v4",
          "v_lshlrev_b32 v4, 2, v4", "v_lshl_add_u32 v4, v3, 9, v4",
          "s_waitcnt lgkmcnt(0)")
        if isinstance(self.stamps, tuple):
            e("s_cmp_lg_u32 s%d, 0" % S_WAVE, "s_cbranch_scc1 L_noat", "s_not_b32 s44, s%d" % S_TS, "v_mov_b32 v%d, 0" % P, "v_mov_b32 v%d, s44" % (P + 1),
              "s_mov_b64 exec, 1", "global_atomic_umax v%d, v%d, s[18:19]" % (P, P + 1), "s_mov_b64 exec, -1", "L_noat:")
        for i in range(4): e("buffer_load_dword v%d, v2, s[4:7], 0 offen offset:%d" % (IX + i, 64 * i))
        e("s_load_dwordx16 s[%d:%d], s[12:13], 0" % (S_H, S_H + 15))
        for ks in range(2):
            for jj in range(8): e("global_load_dword v%d, v4, s[8:9] offset:%d" % (WL + 8 * ks + jj, 1024 * ks + 64 * jj))
        e("v_and_b32 v5, 31, v%d" % LANE, "v_lshlrev_b32 v5, 6, v5",
          "v_lshlrev_b32 v6, 3, v3",
          "v_bfe_u32 v7, v%d, 4, 1" % LANE, "v_lshlrev_b32 v7, 3, v7", "v_lshl_add_u32 v7, v3, 5, v7",
          "v_and_b32 v1, 3, v%d" % LANE, "v_lshlrev_b32 v1, 4, v1")
        for c in range(4): e("global_load_dwordx4 %s, v5, s[8:9] offset:%d" % (R(WR + 4 * c, 4), 16 * c))
        for u in range(4): e("global_load_dwordx2 %s, v6, s[10:11] offset:%d" % (R(BL + 2 * u, 2), 16 * u))
        for t in range(2): e("global_load_dwordx2 %s, v7, s[12:13] offset:%d" % (R(HL + 2 * t, 2), 16 * t))
        e("global_load_dwordx4 %s, v1, s[14:15]" % R(PL, 4))
        e("s_lshl_b32 s%d, s%d, 30" % (S_T0, S_ROLE), "v_cmp_lt_u32 vcc, 15, v%d" % LANE, "v_mov_b32 v%d, 0x40000000" % X,
          "s_mul_i32 s%d, s%d, %d" % (S_BB, S_BL, BS),
          "v_cndmask_b32 v%d, 0, v%d, vcc" % (X, X), "v_or_b32 v%d, s%d, v%d" % (X, S_T0, X), "v_or_b32 v%d, v%d, v1" % (X, X))
        e("s_waitcnt vmcnt(27)")
        self.stamp()
        for i in range(4):
            e("v_lshl_or_b32 v%d, v%d, 6, v%d" % (IX + i, IX + i, X if i == 3 else 1))
            e("buffer_load_dwordx4 %s, v%d, s[36:39], 0 offen" % (R(G0 + 4 * i, 4), IX + i))
        e("s_mul_i32 s%d, s%d, %d" % (S_T0, S_ROLE, 13 * 32), "s_add_u32 s%d, s%d, s%d" % (S_T0, S_T0, S_BB),
          "v_mul_u32_u24 v2, %d, v3" % PS,
          "v_and_b32 v5, 31, v%d" % LANE,
          "v_cmp_lt_u32 vcc, 23, v5", "v_add_u32 v6, 2, v5", "v_add_u32 v7, 82, v5",
          "v_cndmask_b32 v6, v6, v7, vcc", "v_lshl_add_u32 v6, v6, 4, v2", "v_add_u32 v%d, s%d, v6" % (AT1, S_T0),
          "v_cmp_lt_u32 vcc, 15, v5", "v_add_u32 v6, 26, v5", "v_xor_b32 v7, 24, v5", "v_add_u32 v7, 114, v7",
          "v_cndmask_b32 v6, v6, v7, vcc", "v_lshl_add_u32 v6, v6, 4, v2", "v_add_u32 v%d, s%d, v6" % (AT2, S_T0),
          "v_bfe_u32 v6, v%d, 1, 1" % LANE, "v_lshl_add_u32 v6, v6, 4, v2", "v_add_u32 v%d, s%d, v6" % (AE, S_T0),
          "v_bfe_u32 v6, v%d, 1, 1" % LANE, "v_mul_u32_u24 v6, 52, v6", "v_and_b32 v7, 1, v%d" % LANE, "v_mul_u32_u24 v7, 104, v7",
          "v_add_u32 v6, v6, v7", "v_bfe_u32 v7, v%d, 3, 1" % LANE, "v_add_u32 v6, v6, v7", "v_add_u32 v6, %d, v6" % EG,
          "v_lshl_add_u32 v6, v6, 4, v2",
          "v_bfe_u32 v7, v%d, 2, 1" % LANE, "v_bfe_u32 v%d, v%d, 4, 1" % (X + 1, LANE), "v_cmp_eq_u32 vcc, v7, v%d" % (X + 1),
          "v_mov_b32 v7, %d" % (ZR * 16), "s_nop 0", "v_cndmask_b32 v6, v7, v6, vcc", "v_add_u32 v%d, s%d, v6" % (ALA, S_T0),
          "v_cmp_gt_u32 vcc, 25, v5", "v_lshlrev_b32 v6, 5, v5", "v_subrev_u32 v7, 25, v5", "v_mul_u32_u24 v7, 160, v7", "v_add_u32 v7, %d, v7" % (RB * 16),
          "v_cndmask_b32 v6, v7, v6, vcc", "v_add3_u32 v%d, v6, v2, s%d" % (LBASE, S_BB), "v_cndmask_b32 v%d, 0, 1, vcc" % FLAG,
          "v_and_b32 v6, 3, v%d" % LANE, "v_mul_u32_u24 v6, %d, v6" % PS, "v_bfe_u32 v7, v%d, 3, 1" % LANE, "v_mul_u32_u24 v7, %d, v7" % (RB * 16),
          "v_add_u32 v6, v6, v7", "v_lshrrev_b32 v7, 4, v%d" % LANE, "v_lshl_add_u32 v6, v7, 5, v6", "v_bfe_u32 v7, v%d, 2, 1" % LANE,
          "v_lshl_add_u32 v6, v7, 4, v6", "v_add_u32 v%d, s%d, v6" % (AW, S_T0),
          "v_bfe_u32 v6, v%d, 3, 1" % LANE, "v_mul_u32_u24 v6, 0xaaaa, v6", "v_add_u32 v%d, 0x4444, v6" % IDX)
        e("s_mul_i32 s%d, s%d, %d" % (S_T1, S_ROLE, 2 * PS), "s_add_u32 s%d, s%d, s%d" % (S_T1, S_T1, S_BB),
          "v_min_u32 v6, 51, v%d" % LANE, "v_lshlrev_b32 v6, 4, v6", "v_add_u32 v6, s%d, v6" % S_T1)
        for j in range(8): e("v_mov_b32 v%d, 0" % (CI + j))
        for j in range(4): e("v_mov_b32 v%d, 0" % (LAL + j))
        e("ds_write_b128 v6, %s offset:%d" % (R(CI, 4), ZR * 16))
        e("v_and_b32 v6, 7, v%d" % LANE)
        for pos in range(2):
            for c in range(2):
                e("v_cmp_eq_u32 vcc, %d, v6" % (4 * c + pos), "s_nop 1", "v_cndmask_b32 v%d, 0, -1, vcc" % (M + 2 * pos + c))
        e("s_mov_b32 s%d, %s" % (S_THA, f32(-1.0)), "s_mov_b32 s%d, 0xff800000" % S_THB)
        e("s_mov_b32 s40, %s" % f32(LOG2E * 2 ** BETA), "s_mov_b32 s41, %s" % f32(2.0 ** -(BETA + 1)), "s_mov_b32 s42, %s" % f32(0.5 * LOG2E),
          "s_mov_b32 s43, 0xffff0000")
        e("s_waitcnt vmcnt(4) lgkmcnt(0)")
        self.stamp()
        e("v_mov_b32 v%d, 0" % X)
        for j in range(16): e("v_dot2_f32_bf16 v%d, v%d, s%d, v%d" % (X, WR + j, S_H + j, X))
        e("s_lshl_b32 s%d, s%d, 6" % (S_T1, S_WAVE), "s_add_u32 s%d, s%d, %d" % (S_T1, S_T1, SCR),
          "v_lshlrev_b32 v6, 1, v5", "v_add_u32 v6, s%d, v6" % S_T1, "v_add_u32 v7, s%d, v1" % S_T1,
          "v_mul_f32 v%d, s42, v%d" % (X, X), "v_cvt_f16_f32 v%d, v%d" % (X, X), "ds_write_b16 v6, v%d" % X,
          "ds_read_b128 %s, v7" % R(GV, 4))
        for ks in range(2):
            for t in range(4):
                a, b = WL + 8 * ks + 2 * t, WL + 8 * ks + 2 * t + 1
                e("v_lshlrev_b32 v%d, 16, v%d" % (X, a), "v_lshlrev_b32 v%d, 16, v%d" % (X + 1, b),
                  "v_and_b32 v%d, s43, v%d" % (X + 2, a), "v_and_b32 v%d, s43, v%d" % (X + 3, b))
                for j in range(4): e("v_mul_f32 v%d, s40, v%d" % (X + j, X + j))
                e("v_cvt_pk_f16_f32 v%d, v%d, v%d" % (W + 4 * ks + t, X, X + 1), "v_cvt_pk_f16_f32 v%d, v%d, v%d" % (W + 8 + 4 * ks + t, X + 2, X + 3))
        for u in range(4):
            for b0 in range(2):
                src = BL + 2 * u + b0
                e("v_lshlrev_b32 v%d, 16, v%d" % (X, src), "v_and_b32 v%d, s43, v%d" % (X + 1, src))
                for x in range(2):
                    for nd in range(2): e("v_mul_f32 v%d, s40, v%d" % (BIAS + 16 * x + 4 * u + 2 * nd + b0, X + x))
        for t1 in range(2):
            a, b = HL + 2 * t1, HL + 2 * t1 + 1
            e("v_lshlrev_b32 v%d, 16, v%d" % (X, a), "v_lshlrev_b32 v%d, 16, v%d" % (X + 1, b),
              "v_and_b32 v%d, s43, v%d" % (X + 2, a), "v_and_b32 v%d, s43, v%d" % (X + 3, b))
            for j in range(4): e("v_mul_f32 v%d, s41, v%d" % (X + j, X + j))
            e("v_cvt_pk_bf16_f32 v%d, v%d, v%d" % (X + 4, X, X + 1), "v_cvt_pk_bf16_f32 v%d, v%d, v%d" % (X + 5, X + 2, X + 3))
            for pos in range(2):
                for x in range(2):
                    for c in range(2):
                        e("v_and_b32 v%d, v%d, v%d" % (HA + 8 * pos + 4 * x + 2 * c + t1, X + 4 + x, M + 2 * pos + c))
        for j in range(4):
            e("v_lshlrev_b32 v%d, 16, v%d" % (X, PL + j), "v_and_b32 v%d, s43, v%d" % (X + 1, PL + j),
              "v_cvt_pk_f16_f32 v%d, v%d, v%d" % (PV + j, X, X + 1))
        e("s_mul_i32 s44, s%d, 0x3f803f80" % S_ROLE)
        e("s_waitcnt lgkmcnt(0)")
        self.stamp()
        for i in range(4):
            g = G0 + 4 * i
            e("s_waitcnt vmcnt(%d)" % (3 - i))
            if i == 0: self.stamp()
            if i == 3:
                for j in range(4): e("v_or_b32 v%d, s44, v%d" % (g + j, g + j))
                e("s_mov_b64 exec, 0xffff")
            for j in range(4):
                e("v_lshlrev_b32 v%d, 16, v%d" % (X, g + j), "v_and_b32 v%d, s43, v%d" % (X + 1, g + j),
                  "v_cvt_pk_f16_f32 v%d, v%d, v%d" % (g + j, X, X + 1))
            w1 = "ds_write_b128 v%d, %s offset:%d" % (AW, R(g, 4), 128 * i)
            w2 = "ds_write_b128 v%d, %s offset:%d" % (AW, R(g, 4), 128 * i + 800)
            if i < 2: e(w1, w2)
            elif i == 2: e(w1, "s_cmp_lg_u32 s%d, 0" % S_ROLE, "s_cbranch_scc1 L_nodup2", w2, "L_nodup2:")
            else: e("s_cbranch_scc1 L_nodup3", w1, w2, "L_nodup3:")
            a, b = V + 8 * i, V + 8 * i + 4
            for j in range(4): e("v_pk_mul_f16 v%d, v%d, v%d" % (a + j, g + j, GV + j))
            e("ds_write_b128 v%d, %s offset:%d" % (AW, R(a, 4), 128 * i + EG * 16))
            for j in range(4): e("v_pk_mul_f16 v%d, v%d, v%d" % (b + j, g + j, PV + j))
            e("ds_write_b128 v%d, %s offset:%d" % (AW, R(b, 4), 128 * i + EP * 16))
        e("s_mov_b64 exec, -1", "s_waitcnt lgkmcnt(0)")
        self.stamp()
        e("s_barrier")
        self.stamp()
        e("s_mul_i32 s%d, s%d, %d" % (S_T0, S_ROLE, 13 * 32), "s_sub_u32 s%d, %d, s%d" % (S_T0, 25 * 32, S_T0),
          "v_add_u32 v%d, s%d, v%d" % (AX, S_T0, ALA))
        e(self.rd2(LA, AX, 0))
        e("s_cmp_eq_u32 s%d, 0" % S_ROLE, "s_cselect_b32 s%d, 4, 0" % S_TAU, "s_cselect_b32 s%d, 5, 4" % S_CNT)
        lo = ["L_left:",
              "s_lshr_b32 s%d, s%d, 1" % (S_SX, S_TAU), "s_and_b32 s%d, s%d, 1" % (S_SY, S_TAU), "s_add_u32 s%d, s%d, %d" % (S_SY, S_SY, RB),
              "s_cmp_eq_u32 s%d, 4" % S_TAU, "s_cselect_b32 s%d, 0, s%d" % (S_SX, S_SX), "s_cselect_b32 s%d, 1, s%d" % (S_SY, S_SY),
              "s_lshl_b32 s%d, s%d, 5" % (S_T0, S_TAU),
              "s_lshl_b32 s%d, s%d, 4" % (S_SX, S_SX), "s_lshl_b32 s%d, s%d, 4" % (S_SY, S_SY),
              "s_sub_i32 s%d, s%d, s%d" % (S_SX, S_SX, S_T0), "s_sub_i32 s%d, s%d, s%d" % (S_SY, S_SY, S_T0), "s_sub_i32 s%d, s%d, 16" % (S_SY, S_SY),
              "v_add_u32 v%d, s%d, v%d" % (TT, S_T0, LBASE),
              "v_mad_i32_i24 v%d, v%d, s%d, v%d" % (AX, FLAG, S_SX, TT), "v_mad_i32_i24 v%d, v%d, s%d, v%d" % (AY, FLAG, S_SY, TT)]
        lo += self.rd2(ES, AX, 0) + self.rd2(EB, AY, 16) + ["s_waitcnt lgkmcnt(0)"]
        lo += ["v_pk_mul_f16 v%d, v%d, v%d" % (T2 + i, ES + i, EB + i) for i in range(8)] + ["s_nop 1"]
        m0 = self.mf(W, T2, 0, D); m1 = self.mf(W, T2, 1, D + 16)
        lo += m0 + m1 + self.ls(LD + 4, T2, CI + 4) + ["s_nop 7"] + self.cvt(D, P) + self.cvt(D + 16, P + 8)
        lo += [self.smf(LD + 4, 1, 0, P), "s_nop 0", self.smf(LD + 4, 1, 1, P + 8), "s_mov_b64 exec, 0x3fffffff", "s_nop 6"]
        sb = self.soft_b()
        lo += sb[0] + sb[1] + sb[2] + ["s_mov_b64 exec, -1",
              "s_add_u32 s%d, s%d, 1" % (S_TAU, S_TAU), "s_cmp_lt_u32 s%d, s%d" % (S_TAU, S_CNT), "s_cbranch_scc1 L_left"]
        e(lo)
        self.stamp()
        e("s_mov_b32 s%d, 0xff800000" % S_THB)
        pre = self.rd2(ES, AE, 0) + self.rd2(EB, AE, RB * 16) + self.rd2(T1, AT1, 0) + ["s_sub_u32 s%d, 12, s%d" % (S_CNT, S_ROLE), "s_waitcnt lgkmcnt(2)"]
        pre += self.vgen(VS, ES, 0) + self.vgen(VS, ES, 1) + self.vgen(VB, EB, 0)[:4]
        first = self.body(prev=False)
        loop = self.body()
        drain = self.body(cur=False)
        e(pre, first, ".p2align 6" if False else [], "L_loop:", loop,
          "s_sub_u32 s%d, s%d, 1" % (S_CNT, S_CNT), "s_cmp_lg_u32 s%d, 0" % S_CNT, "s_cbranch_scc1 L_loop", drain)
        bad = hz.check(lo + lo, "left") + hz.check(lo + pre + first + loop + ["s_nop 2"] + loop + ["s_nop 2"] + drain, "main")
        self.stamp()
        A = D
        fin = ["v_min_f32 v%d, v%d, v%d" % (A, CI, CI + 5)]
        def red(op, regs_):
            o = []
            for mod in ("row_shr:1", "row_shr:2", "row_shr:4", "row_shr:8", "row_bcast:15 row_mask:0xa", "row_bcast:31 row_mask:0xc"):
                o.append("s_nop %d" % (1 if len(regs_) == 1 else 0))
                for r in regs_:
                    mm = mod if "row_mask" in mod else mod + " row_mask:0xf"
                    o.append("%s_dpp v%d, v%d, v%d %s bank_mask:0xf" % (op, r, r, r, mm))
            return o
        fin += red("v_min_f32", [A]) + ["s_nop 0", "v_readlane_b32 s%d, v%d, 63" % (S_T0, A), "s_nop 1",
               "v_sub_f32 v%d, s%d, v%d" % (A + 1, S_T0, CI), "v_sub_f32 v%d, s%d, v%d" % (A + 2, S_T0, CI + 5),
               "v_exp_f32 v%d, v%d" % (A + 1, A + 1), "v_exp_f32 v%d, v%d" % (A + 2, A + 2), "v_mov_b32 v%d, s%d" % (A + 4, S_T0),
               "v_mul_f32 v%d, v%d, v%d" % (A + 5, LAL, A + 1), "v_mul_f32 v%d, v%d, v%d" % (A + 6, ACA, A + 1),
               "v_fmac_f32 v%d, v%d, v%d" % (A + 5, LBE, A + 2), "v_fmac_f32 v%d, v%d, v%d" % (A + 6, ACB, A + 2)]
        fin += red("v_add_f32", [A + 5, A + 6])
        fin += ["s_lshl_b32 s%d, s%d, 4" % (S_T1, S_WAVE), "s_add_u32 s%d, s%d, %d" % (S_T1, S_T1, RED), "v_mov_b32 v%d, s%d" % (A + 8, S_T1),
                "s_mov_b32 exec_lo, 0", "s_mov_b32 exec_hi, 0x80000000",
                "ds_write_b128 v%d, %s" % (A + 8, R(A + 4, 4)), "s_waitcnt lgkmcnt(0)", "s_barrier",
                "s_cmp_lg_u32 s%d, 0" % S_ROLE, "s_cbranch_scc1 L_done",
                "ds_read_b128 %s, v%d offset:64" % (R(A + 12, 4), A + 8),
                "s_lshl_b32 s3, s3, 1", "v_mov_b32 v%d, s3" % (A + 9),
                "s_waitcnt lgkmcnt(0)",
                "v_min_f32 v%d, v%d, v%d" % (A, A + 4, A + 12),
                "v_sub_f32 v%d, v%d, v%d" % (A + 1, A, A + 4), "v_sub_f32 v%d, v%d, v%d" % (A + 2, A, A + 12),
                "v_exp_f32 v%d, v%d" % (A + 1, A + 1), "v_exp_f32 v%d, v%d" % (A + 2, A + 2), "s_nop 0",
                "v_mul_f32 v%d, v%d, v%d" % (A + 5, A + 5, A + 1), "v_mul_f32 v%d, v%d, v%d" % (A + 6, A + 6, A + 1),
                "v_fmac_f32 v%d, v%d, v%d" % (A + 5, A + 13, A + 2), "v_fmac_f32 v%d, v%d, v%d" % (A + 6, A + 14, A + 2),
                "v_rcp_f32 v%d, v%d" % (A + 5, A + 5), "s_nop 0", "v_mul_f32 v%d, v%d, v%d" % (A + 6, A + 6, A + 5),
                "v_cvt_pk_bf16_f32 v%d, v%d, v%d" % (A + 6, A + 6, A + 6),
                "global_store_short v%d, v%d, s[16:17]" % (A + 9, A + 6),
                "L_done:"]
        bad += hz.check(drain + fin, "fin")
        e(fin)
        if isinstance(self.stamps, tuple):
            kk = self.stamps[1]
            self.stamp()
            e("s_waitcnt lgkmcnt(0)", "s_and_b32 s%d, s%d, 3" % (S_T0, S_WAVE), "s_cmp_lg_u32 s%d, 0" % S_T0, "s_cbranch_scc1 L_end",
              "v_mov_b32 v%d, 0" % (A + 9), "v_mov_b32 v%d, 0" % (A + 10),
              "global_atomic_umax v%d, v%d, v%d, s[18:19] sc0" % (A + 11, A + 9, A + 10), "s_waitcnt vmcnt(0)",
              "v_readlane_b32 s%d, v%d, 63" % (S_T0, A + 11), "s_nop 3", "s_not_b32 s%d, s%d" % (S_T0, S_T0),
              "s_sub_u32 s%d, s%d, s%d" % (S_T0, S_TS + 2 * kk, S_T0), "s_mul_i32 s%d, s%d, 10" % (S_T0, S_T0), "s_min_u32 s%d, s%d, 100000" % (S_T0, S_T0),
              "L_spin:", "s_memrealtime s[44:45]", "s_waitcnt lgkmcnt(0)", "s_sub_u32 s44, s44, s%d" % (S_TS + 2 * (self.nst - 1)),
              "s_cmp_lt_u32 s44, s%d" % S_T0, "s_cbranch_scc1 L_spin")
        elif self.stamps == "dbg":
            self.stamp()
            e("s_waitcnt lgkmcnt(0)", "v_mov_b32 v%d, 0" % (A + 9), "s_not_b32 s%d, s%d" % (S_T0, S_TS), "v_mov_b32 v%d, s%d" % (A + 10, S_T0),
              "global_atomic_umax v%d, v%d, s[18:19]" % (A + 9, A + 10))
            for k in range(self.nst):
                e("v_mov_b32 v%d, s%d" % (A + 11 + k, S_TS + 2 * k), "global_atomic_umax v%d, v%d, s[18:19] offset:%d" % (A + 9, A + 11 + k, 4 * k + 4))
        elif self.stamps:
            self.stamp()
            e("s_load_dwordx2 s[18:19], s[0:1], 80", "s_waitcnt lgkmcnt(0)",
              "s_lshl_b32 s%d, s2, 3" % S_T0, "s_add_u32 s%d, s%d, s%d" % (S_T0, S_T0, S_WAVE), "s_lshl_b32 s%d, s%d, 6" % (S_T0, S_T0),
              "v_mov_b32 v%d, s%d" % (A + 9, S_T0))
            for k in range(self.nst):
                e("v_mov_b32 v%d, s%d" % (A + 10, S_TS + 2 * k), "global_store_dword v%d, v%d, s[18:19] offset:%d" % (A + 9, A + 10, 4 * k))
        e("L_end:", "s_endpgm")
        bad += hz.check(self.L[:self.L.index("L_left:")], "prologue")
        e(self.cold)
        assert bad == 0, "hazards"

    def text(self):
        head = open("cdna_kernels/%s.s.ref" % NAME).read().split("; Override")[0]
        o = [head.rstrip(), "; Generated by gen/gen.py (hand-designed schedule, see comments there).",
             "; @launch grid=(256,1,1) block=(512,1,1) lds=%d" % LDS,
             '.amdgcn_target "amdgcn-amd-amdhsa--gfx950"', ".text", ".globl %s_kernel" % NAME, ".p2align 8",
             ".type %s_kernel,@function" % NAME, "%s_kernel:" % NAME]
        for l in self.L: o.append(l if l.endswith(":") or l.startswith(".") else "    " + l)
        o += ['.section .rodata,"a"', ".p2align 6", ".amdhsa_kernel %s_kernel" % NAME,
              "  .amdhsa_next_free_vgpr %d" % NV, "  .amdhsa_next_free_sgpr 102", "  .amdhsa_accum_offset %d" % NV,
              "  .amdhsa_group_segment_fixed_size 0", "  .amdhsa_kernarg_size 88", "  .amdhsa_user_sgpr_count 2",
              "  .amdhsa_user_sgpr_kernarg_segment_ptr 1", "  .amdhsa_system_sgpr_workgroup_id_x 1", ".end_amdhsa_kernel", ""]
        return "\n".join(o)

if __name__ == "__main__":
    stamps = "dbg" if "--dbg" in sys.argv else ("--stamps" in sys.argv)
    for a in sys.argv:
        if a.startswith("--amp="): stamps = ("amp", int(a[6:]))
    out = [a for a in sys.argv[1:] if not a.startswith("--")]
    g = Gen(stamps); g.build()
    open(out[0] if out else "cdna_kernels/%s.s" % NAME, "w").write(g.text())
```

```python
import sys, struct
sys.path.insert(0, "gen")
import hz

NAME = "standalone__factorization_afm__recsys"
def f32(x): return "0x%08x" % struct.unpack("<I", struct.pack("<f", x))[0]
def R(b, n): return "v[%d:%d]" % (b, b + n - 1)
LOG2E = 1.4426950408889634

RB = 104; EG = 202; EP = 254; ZR = 410; NROW = 462
PA = 7440
PB = 14912
BS = 2 * PB
WF = 4 * BS
WXS = 16 * 80
BT = WF + 2 * WXS
HT = BT + 384
GT = HT + 256
RED = GT + 128
LDS = RED + 128
BETA = 4

W = 8; BIAS = 24; V = 56; E = 88; T = 104; D = 120; P = 168; HA = 184; LA = 200; LD = 208; CI = 216
LAL, ACA, LBE, ACB = 224, 225, 226, 227
P0, P1, TT, TZ = 228, 229, 230, 231
AT1, AT2, AE, ALA = 232, 233, 234, 235
IDX = 236; LANE = 237; AX = 238; AY = 239; NF = 240; LBASE = 241
AWP, AH0, AH1, ABT, ALX, ALY, AW = 242, 243, 244, 245, 246, 247, 248
NV = 252
VS = V; VB = V + 16; ES = E; EB = E + 8; T1 = T; T2 = T + 8
G0 = D + 32
GV = LD; PV = LD + 4
S_WAVE, S_BL, S_ROLE, S_BB, S_CNT, S_THA, S_THB, S_INC, S_T0, S_T1 = 20, 21, 22, 23, 24, 25, 26, 27, 30, 31
S_TS = 64
THR = 2.0 ** 40
OPT = {}

class Gen:
    def __init__(self, stamps=False):
        self.L = []; self.cold = []; self.nrare = 0; self.stamps = stamps; self.nst = 0
    def e(self, *l):
        for x in l:
            if isinstance(x, (list, tuple)): self.e(*x)
            else: self.L.append(x)
    def stamp(self, k=None):
        if self.stamps:
            if k is None: k = self.nst; self.nst += 1
            self.e("%s s[%d:%d]" % ("s_memtime" if OPT.get("cyc") else "s_memrealtime", S_TS + 2 * k, S_TS + 2 * k + 1))
            return k

    jobs = [(VS, T1, 0, 0), (VB, T1, 0, 1), (VS, T1, 1, 0), (VB, T1, 1, 1), (VB, T2, 0, 1), (VB, T2, 1, 1)]
    def mf(self, a, t, c, d):
        return ["v_mfma_f32_32x32x16_f16 %s, %s, %s, %s" % (R(d, 16), R(a, 4), R(t, 4), R(c, 16)),
                "v_mfma_f32_32x32x16_f16 %s, %s, %s, %s" % (R(d, 16), R(a + 4, 4), R(t + 4, 4), R(d, 16))]
    def cvt(self, k):
        d, pb = D + 16 * (k % 3), P + 8 * (k % 2)
        return ["v_cvt_pk_bf16_f32 v%d, |v%d|, |v%d|" % (pb + i, d + 2 * i, d + 2 * i + 1) for i in range(8)]
    def smf(self, dd, ha, k):
        return "v_smfmac_f32_16x16x64_bf16 %s, %s, %s, v%d" % (R(dd, 4), R(ha, 4), R(P + 8 * (k % 2), 8), IDX)
    def smj(self, k):
        J = self.jobs[k % 6]
        return self.smf(LD + (4 if k % 6 >= 4 else 0), HA + 8 * J[3] + 4 * J[2], k)
    def mul8(self, d, a, b): return ["v_pk_mul_f16 v%d, v%d, v%d" % (d + i, a + i, b + i) for i in range(8)]
    def vgen(self, v, e, h): return self.mul8(v + 8 * h, W + 8 * h, e)
    def ls(self, dd, la, t, ci):
        return ["v_mfma_f32_16x16x32_f16 %s, %s, %s, %s" % (R(dd, 4), R(la, 4), R(t, 4), ci),
                "v_mfma_f32_16x16x32_f16 %s, %s, %s, %s" % (R(dd, 4), R(la + 4, 4), R(t + 4, 4), R(dd, 4))]
    def rd(self, r, a, off): return "ds_read_b128 %s, v%d offset:%d" % (R(r, 4), a, off)
    def rd2(self, r, a, off, st=PB): return [self.rd(r, a, off), self.rd(r + 4, a, off + st)]

    def soft(self, es, ss, l, acc, cis, sthr):
        ps = [P0, P1][:len(es)]
        head = ["v_exp_f32 v%d, v%d" % (p, x) for p, x in zip(ps, es)]
        if len(es) == 2: add = ["v_add_f32 v%d, v%d, v%d" % (TT, P0, P1)]; t = TT
        else: add = []; t = P0
        n = self.nrare; self.nrare += 1
        c = ["L_rare%d:" % n, "s_nop 7",
             "v_mov_b32 v%d, 0xff800000" % TZ,
             "v_cmp_eq_f32 vcc, 0, v%d" % l, "s_nop 1",
             "v_cndmask_b32 v%d, 0, v%d, vcc" % (TT, TZ)]
        for x in es: c.append("v_max_f32 v%d, v%d, v%d" % (TT, TT, x))
        c += ["v_cmp_eq_f32 vcc, v%d, v%d" % (TZ, TT), "s_nop 1", "v_cndmask_b32 v%d, v%d, 0, vcc" % (TT, TT)]
        for x in list(es) + list(cis): c.append("v_sub_f32 v%d, v%d, v%d" % (x, x, TT))
        c += ["v_max_f32 v%d, 0, v%d" % (TT, TT), "v_exp_f32 v%d, -v%d" % (TT, TT), "s_mov_b32 s%d, %s" % (sthr, f32(THR)),
              "v_mul_f32 v%d, v%d, v%d" % (l, l, TT), "v_mul_f32 v%d, v%d, v%d" % (acc, acc, TT)]
        c += head + ["s_nop 0"] + add + ["s_branch L_back%d" % n]
        self.cold += c
        return head, add + ["v_cmp_nge_f32 vcc, s%d, v%d" % (sthr, t)], ["s_cbranch_vccnz L_rare%d" % n, "L_back%d:" % n], \
            ["v_add_f32 v%d, v%d, v%d" % (l, l, t)] + ["v_fmac_f32 v%d, v%d, v%d" % (acc, p, s) for p, s in zip(ps, ss)]
    def soft_a(self): return self.soft([LD, LD + 1], [LD + 2, LD + 3], LAL, ACA, [CI, CI + 1], S_THA)
    def soft_b(self): return self.soft([LD + 5], [LD + 7], LBE, ACB, [CI + 5], S_THB)

    def window(self, pre, m, mem, l, ins):
        l = list(l)
        def take(n):
            got = []; cost = 0
            while l and cost < n:
                x = l.pop(0); got.append(x)
                cost += 2 if x.startswith(("v_exp", "v_permlane")) else (1 if x.startswith("v_") else 0)
            return got
        out = pre + [m[0]] + mem + take(6) + [m[1]] + take(6)
        for x in ins:
            out += [x]
            if x.startswith("v_"): out += take(1 if "smfmac" in x else 2)
        return out + l

    def body(self, kind, off=0, inc=None, left=False):
        J = self.jobs
        prev = kind != "first"; nxt = kind != "last"
        vS0, vS1, vB0, vB1 = self.vgen(VS, ES, 0), self.vgen(VS, ES, 1), self.vgen(VB, EB, 0), self.vgen(VB, EB, 1)
        if not nxt: vS0 = vS1 = []; vB0 = [[]] * 0 + [None] * 4 + vB0[4:]
        if prev: sa = self.soft_a(); sb = self.soft_b()
        add = lambda a: ["v_add_u32 v%d, %s, v%d" % (a, inc, a)] if inc else []
        wl = lambda n: ["s_waitcnt lgkmcnt(%d)" % n]
        out = []
        for k in range(6):
            m = self.mf(J[k][0] + 8 * J[k][2], J[k][1], BIAS + 16 * J[k][2], D + 16 * (k % 3))
            c = self.cvt(k - 2) if (k >= 2 or prev) else []
            ins = [self.smj(k - 3)] if (k >= 3 or prev) else []
            pre, mem = [], []
            if kind == "first":
                eg = []
                for j in range(4):
                    a = P + 8 * (j % 2)
                    o = ((j >> 1) * RB + (j & 1)) * 16
                    eg += ["v_pk_mul_f16 v%d, v%d, v%d" % (a + i, G0 + 4 * j + i, GV + i) for i in range(4)]
                    eg += ["ds_write_b128 v%d, %s offset:%d" % (AW, R(a, 4), o + EG * 16)]
                    eg += ["v_pk_mul_f16 v%d, v%d, v%d" % (a + 4 + i, G0 + 4 * j + i, PV + i) for i in range(4)]
                    eg += ["ds_write_b128 v%d, %s offset:%d" % (AW, R(a + 4, 4), o + EP * 16)]
                if k == 0:
                    pre = wl(0); mem = self.rd2(ES, AE, off + 32) + self.rd2(T2, AT2, off)
                    l = vB0[4:] + eg[:20]
                elif k == 1:
                    l = eg[20:] + self.rd2(LA, ALA, off) + vB1[:5] + add(ALA) + add(AT2)
                elif k == 2:
                    l = c + vB1[5:] + wl(0) + vS0[:3]
                    ins += self.ls(LD, LA, T1, R(CI, 4))
                elif k == 3:
                    mem = self.rd2(EB, AE, off + 32 + RB * 16)
                    l = c + vS0[3:5] + add(AE)
            elif k == 0:
                pre = wl(0); mem = self.rd2(LA, ALA, off) + (self.rd2(ES, AE, off + 32) if nxt else [])
                if left: mem += self.rd2(ES, AWP, 0, 32)
                l = c + vB0[4:] + vB1[:3] + add(ALA)
            elif k == 1:
                mem = self.rd2(T2, AT2, off)
                l = c[:6] + sa[0] + c[6:] + sa[1] + vB1[3:5] + sa[2] + sa[3] + add(AT2)
            elif k == 2:
                pre = wl(2)
                l = c + vB1[5:] + vS0[:3]
                if left: l += self.laddr(0)
                ins += self.ls(LD, LA, T1, R(CI, 4))
            elif k == 3:
                if nxt: mem = self.rd2(EB, AE, off + 32 + RB * 16)
                if left: mem = self.lread(0, W, W + 8) + [self.rd(EB, AH0, 0), self.rd(EB + 4, AH1, 0)] + [self.rd(VS + 4 * i, ABT, 256 + 16 * i) for i in range(4)]
                l = c[:6] + sb[0] + c[6:] + sb[1] + vS0[3:5] + sb[2] + sb[3] + add(AE)
            if k == 4:
                pre = wl(10 if left else (2 if nxt else 0))
                if nxt: mem = self.rd2(T1, AT1, off + 32)
                l = c + vS0[5:] + vS1[:4] + add(AT1)
                if left: l += self.laddr(1)
            elif k == 5:
                l = c + vS1[4:] + ((wl(2) + vB0[:4]) if nxt else [])
                if left:
                    mem = self.lread(1, T1, BIAS)
                    l = c + wl(4) + self.mul8(W, W, W + 8) + self.laddr(2)
                ins += self.ls(LD + 4, LA, T2, R(CI + 4, 4))
                if left: ins = self.rd2(VB, ALX, 0, 32) + self.rd2(VB + 8, ALY, 0, 32) + ins
            out += self.window(pre, m, mem, l, ins)
        return out

    LX = [0, 0, 1, 1, 0]; LY = [RB, RB + 1, RB, RB + 1, 1]
    def laddr(self, t):
        return ["s_movk_i32 s%d, %d" % (S_T0, 32 * t + 16 * RB - 16 * self.LX[t]), "s_movk_i32 s%d, %d" % (S_T1, 32 * t + 16 * (RB + 1) - 16 * self.LY[t]),
                "v_mad_u32_u24 v%d, v%d, s%d, v%d" % (AX, NF, S_T0, LBASE), "v_mad_u32_u24 v%d, v%d, s%d, v%d" % (AY, NF, S_T1, LBASE)]
    def lread(self, t, x, y): return self.rd2(x, AX, 16 * self.LX[t]) + self.rd2(y, AY, 16 * self.LY[t])

    def drain(self):
        sa = self.soft_a(); sb = self.soft_b()
        return ["s_nop 1"] + self.cvt(4) + [self.smj(3)] + self.cvt(5) + [self.smj(4)] + sa[0] + [self.smj(5)] + sa[1] + sa[2] + sa[3] + \
            ["s_nop 2"] + sb[0] + ["s_nop 0"] + sb[1] + sb[2] + sb[3]

    def tail_left(self):
        wl = lambda n: ["s_waitcnt lgkmcnt(%d)" % n]
        XB = [W, T1, T2, W + 8, W]; YB = [W + 8, BIAS, LA, BIAS + 8, BIAS]
        GA = [BIAS + 16, BIAS + 16, BIAS + 20, BIAS + 20, BIAS + 24]
        sa = self.soft_a(); sb = self.soft_b()
        def sm(t): return self.smf(GA[t], EB + 4 * (t % 2), 6 + t)
        def lsx(t): return self.ls(GA[t], VB + 8 * (t % 2), XB[t], "0" if t % 2 == 0 else R(GA[t], 4))
        def fold(g): return ["v_permlane32_swap_b32 v%d, v%d" % (g, g + 1), "v_add_f32 v%d, v%d, v%d" % (g, g, g + 1), "v_add_f32 v%d, v%d, v%d" % (g, g, CI + 5)]
        mf = lambda t: self.mf(ES, XB[t], VS, D + 16 * ((6 + t) % 3))
        out = []
        out += self.window(["s_nop 0"], mf(0), self.lread(2, T2, LA), self.cvt(4) + wl(4) + self.mul8(T1, T1, BIAS) + self.laddr(3), [self.smj(3)] + lsx(0))
        c = self.cvt(5)
        out += self.window([], mf(1), self.lread(3, W + 8, BIAS + 8), c[:6] + sa[0] + c[6:] + sa[1] + wl(4) + self.mul8(T2, T2, LA)[:2] + sa[2] + sa[3] + self.mul8(T2, T2, LA)[2:] + self.laddr(4),
                           [self.smj(4)] + lsx(1))
        out += self.window([], mf(2), self.lread(4, W, BIAS), self.cvt(6) + wl(4) + self.mul8(W + 8, W + 8, BIAS + 8) + ["s_nop 0"], [self.smj(5)] + lsx(2))
        c = self.cvt(7)
        out += self.window([], mf(3), [], c[:6] + sb[0] + c[6:] + sb[1] + wl(0) + self.mul8(W, W, BIAS)[:2] + sb[2] + sb[3] + self.mul8(W, W, BIAS)[2:] + ["s_nop 1"], [sm(0)] + lsx(3))
        out += self.window([], mf(4), [], self.cvt(8), [sm(1)] + lsx(4))
        out += self.cvt(9) + [sm(2)] + fold(GA[0]) + self.cvt(10) + [sm(3), "s_nop 0", sm(4), "s_nop 5"] + fold(GA[2])
        s2 = self.soft([GA[0], GA[2]], [GA[0] + 2, GA[2] + 2], LBE, ACB, [CI + 5], S_THB)
        out += ["s_mov_b32 exec_lo, 0x3fffffff", "s_mov_b32 exec_hi, 0x3fffffff"] + s2[0] + ["s_nop 0"] + s2[1] + s2[2] + s2[3] + ["s_mov_b64 exec, -1"]
        s1 = self.soft([GA[4]], [GA[4] + 2], LBE, ACB, [CI + 5], S_THB)
        out += fold(GA[4]) + ["s_mov_b64 exec, 0x3fffffff"] + s1[0] + ["s_nop 0"] + s1[1] + s1[2] + s1[3] + ["s_mov_b64 exec, -1"]
        return out

    def build(self):
        e = self.e
        IX = D
        WL, HL, S0, S1 = D + 4, D + 5, D + 6, D + 7
        X = D + 8
        L = LANE
        e("s_cmp_ge_u32 s2, 256", "s_cbranch_scc1 L_end")
        self.stamp()
        e("s_load_dwordx2 s[4:5], s[0:1], 0", "s_load_dwordx2 s[36:37], s[0:1], 8", "s_load_dwordx4 s[8:11], s[0:1], 32",
          "s_load_dwordx4 s[12:15], s[0:1], 48", "s_load_dwordx4 s[16:19], s[0:1], 64")
        e("v_lshrrev_b32 v1, 6, v0", "v_and_b32 v%d, 63, v0" % L,
          "v_readfirstlane_b32 s%d, v1" % S_WAVE,
          "v_and_b32 v2, 60, v0", "v_lshlrev_b32 v2, 2, v2",
          "s_mov_b32 s6, 409600", "s_mov_b32 s7, 0x00020000", "s_mov_b32 s38, 6400000", "s_mov_b32 s39, 0x00020000",
          "s_and_b32 s%d, s%d, 3" % (S_BL, S_WAVE), "s_lshr_b32 s%d, s%d, 2" % (S_ROLE, S_WAVE),
          "s_lshl_b32 s3, s2, 2", "s_add_u32 s3, s3, s%d" % S_BL,
          "s_mul_i32 s%d, s3, 400" % S_T0, "s_mul_i32 s%d, s%d, 208" % (S_T1, S_ROLE), "s_add_u32 s%d, s%d, s%d" % (S_T0, S_T0, S_T1),
          "v_lshlrev_b32 v4, 2, v0", "v_and_b32 v5, 60, v4",
          "v_lshrrev_b32 v3, 5, v%d" % L,
          "v_mov_b32 v%d, 0" % S0, "v_mov_b32 v%d, 0" % S1, "v_add_u32 v2, s%d, v2" % S_T0,
          "s_waitcnt lgkmcnt(0)")
        self.stamp()
        e("buffer_load_dwordx4 %s, v2, s[4:7], 0 offen" % R(IX, 4),
          "global_load_dword v%d, v4, s[8:9]" % WL, "global_load_dword v%d, v5, s[12:13]" % HL)
        e("s_cmp_gt_u32 s%d, 3" % S_WAVE, "s_cbranch_scc1 L_sp_done", "s_cmp_eq_u32 s%d, 3" % S_WAVE, "s_cbranch_scc1 L_sp_p",
          "s_cmp_eq_u32 s%d, 2" % S_WAVE, "s_cbranch_scc1 L_sp_h",
          "v_and_b32 v6, 1, v%d" % L, "v_bfe_u32 v7, v%d, 4, 1" % L, "v_lshl_add_u32 v6, v7, 1, v6", "v_and_b32 v7, 12, v%d" % L, "v_add_u32 v6, v6, v7",
          "s_lshl_b32 s%d, s%d, 2" % (S_T1, S_WAVE), "s_sub_u32 s%d, 5, s%d" % (S_T1, S_T1),
          "v_bfe_u32 v7, v%d, s%d, 1" % (L, S_T1), "v_lshl_add_u32 v6, v6, 1, v7", "v_lshlrev_b32 v6, 1, v6",
          "global_load_short_d16_hi v%d, v6, s[10:11]" % S0, "s_branch L_sp_done",
          "L_sp_h:",
          "v_bfe_u32 v6, v%d, 3, 1" % L, "v_lshlrev_b32 v6, 1, v6", "v_bfe_u32 v7, v%d, 4, 1" % L, "v_lshl_add_u32 v6, v7, 3, v6",
          "v_and_b32 v7, 1, v%d" % L, "v_lshl_add_u32 v6, v7, 2, v6", "v_lshl_add_u32 v6, v6, 1, v3", "v_lshlrev_b32 v6, 1, v6",
          "global_load_short_d16_hi v%d, v6, s[12:13]" % S0, "global_load_short_d16_hi v%d, v6, s[12:13] offset:4" % S1, "s_branch L_sp_done",
          "L_sp_p:",
          "global_load_short_d16_hi v%d, v5, s[14:15]" % S0, "global_load_short_d16_hi v%d, v5, s[14:15] offset:2" % S1,
          "L_sp_done:")
        e("s_lshl_b32 s%d, s%d, 2" % (S_T1, S_ROLE), "s_sub_u32 s%d, 51, s%d" % (S_T1, S_T1),
          "v_and_b32 v1, 3, v%d" % L, "v_lshlrev_b32 v1, 4, v1",
          "v_cmp_lt_u32 s[32:33], s%d, v%d" % (S_T1, L), "v_or_b32 v6, 0x40000000, v1",
          "s_mul_i32 s%d, s%d, %d" % (S_BB, S_BL, BS),
          "v_cndmask_b32 v%d, v1, v6, s[32:33]" % X, "s_not_b64 s[32:33], s[32:33]")
        addr = ["s_mul_i32 s%d, s%d, %d" % (S_T0, S_ROLE, 13 * 32), "s_add_u32 s%d, s%d, s%d" % (S_T0, S_T0, S_BB),
          "v_mul_u32_u24 v2, %d, v3" % PA,
          "v_and_b32 v5, 31, v%d" % L,
          "v_cmp_lt_u32 vcc, 23, v5", "v_add_u32 v6, 2, v5", "v_add_u32 v7, 82, v5",
          "v_cndmask_b32 v6, v6, v7, vcc", "v_lshl_add_u32 v6, v6, 4, v2", "v_add_u32 v%d, s%d, v6" % (AT1, S_T0),
          "v_cmp_lt_u32 vcc, 15, v5", "v_add_u32 v6, 26, v5", "v_xor_b32 v7, 24, v5", "v_add_u32 v7, 114, v7",
          "v_cndmask_b32 v6, v6, v7, vcc", "v_lshl_add_u32 v6, v6, 4, v2", "v_add_u32 v%d, s%d, v6" % (AT2, S_T0),
          "v_bfe_u32 v6, v%d, 1, 1" % L, "v_lshl_add_u32 v7, v6, 4, v2", "v_add_u32 v%d, s%d, v7" % (AE, S_T0),
          "v_mul_u32_u24 v6, %d, v6" % PB, "v_and_b32 v7, 1, v%d" % L, "v_mad_u32_u24 v6, v7, s46, v6",
          "v_lshrrev_b32 v7, 2, v%d" % L, "v_lshl_add_u32 v6, v7, 5, v6", "v_add_u32 v%d, s%d, v6" % (AW, S_T0),
          "v_bfe_u32 v6, v%d, 1, 1" % L, "v_mul_u32_u24 v6, 52, v6", "v_and_b32 v7, 1, v%d" % L, "v_mul_u32_u24 v7, 104, v7",
          "v_add_u32 v6, v6, v7", "v_bfe_u32 v7, v%d, 3, 1" % L, "v_add_u32 v6, v6, v7", "v_add_u32 v6, %d, v6" % EG,
          "v_lshl_add_u32 v6, v6, 4, v2",
          "v_lshrrev_b32 v7, 2, v%d" % L, "v_xor_b32 v7, v7, v%d" % L, "v_and_b32 v%d, 4, v7" % (X + 1),
          "v_cmp_eq_u32 vcc, 0, v%d" % (X + 1),
          "v_mov_b32 v7, %d" % (ZR * 16), "s_add_u32 s%d, s%d, %d" % (S_T1, S_BB, ZR * 16),
          "v_cndmask_b32 v6, v7, v6, vcc", "v_add_u32 v%d, s%d, v6" % (ALA, S_T0),
          "v_and_b32 v6, 11, v%d" % L, "v_or_b32 v6, v6, v%d" % (X + 1), "v_mov_b32 v%d, s%d" % (X + 1, S_T1),
          "v_lshlrev_b32 v7, 4, v3", "v_add_u32 v7, %d, v7" % GT, "v_add_u32 v%d, 64, v7" % (X + 2),
          "v_cmp_eq_u32 vcc, 0, v6", "v_cmp_eq_u32 s[34:35], 2, v6", "s_nop 0",
          "v_cndmask_b32 v%d, v%d, v7, vcc" % (ALX, X + 1), "v_cndmask_b32 v%d, v%d, v%d, s[34:35]" % (ALX, ALX, X + 2),
          "v_cmp_eq_u32 vcc, 9, v6", "v_cmp_eq_u32 s[34:35], 10, v6", "s_nop 0",
          "v_cndmask_b32 v%d, v%d, v7, vcc" % (ALY, X + 1), "v_cndmask_b32 v%d, v%d, v%d, s[34:35]" % (ALY, ALY, X + 2),
          "v_lshrrev_b32 v6, 4, v%d" % L, "v_lshlrev_b32 v6, 5, v6", "v_and_b32 v7, 4, v%d" % L, "v_lshl_add_u32 v6, v7, 2, v6", "v_add_u32 v6, %d, v6" % HT,
          "v_and_b32 v7, 3, v%d" % L, "v_cmp_eq_u32 vcc, 0, v7", "v_cmp_eq_u32 s[34:35], 1, v7", "s_nop 0",
          "v_cndmask_b32 v%d, v%d, v6, vcc" % (AH0, X + 1), "v_cndmask_b32 v%d, v%d, v6, s[34:35]" % (AH1, X + 1),
          "v_and_b32 v6, 1, v%d" % L, "v_bfe_u32 v7, v%d, 2, 3" % L, "v_lshl_add_u32 v6, v7, 1, v6", "v_mul_u32_u24 v6, 80, v6",
          "v_lshl_add_u32 v6, v3, 4, v6", "v_add_u32 v%d, %d, v6" % (AWP, WF),
          "v_lshlrev_b32 v6, 6, v3", "v_add_u32 v%d, %d, v6" % (ABT, BT),
          "v_cmp_gt_u32 vcc, 25, v5", "v_lshlrev_b32 v6, 5, v5", "v_subrev_u32 v7, 25, v5", "v_mul_u32_u24 v7, 160, v7",
          "v_cndmask_b32 v6, v7, v6, vcc", "v_add3_u32 v%d, v6, v2, s%d" % (LBASE, S_BB), "v_cndmask_b32 v%d, 1, 0, vcc" % NF,
          "v_bfe_u32 v6, v%d, 3, 1" % L, "v_mul_u32_u24 v6, 0xaaaa, v6", "v_add_u32 v%d, 0x4444, v6" % IDX]
        e("s_movk_i32 s46, %d" % PA)
        for j in range(8): e("v_mov_b32 v%d, 0" % (CI + j))
        for j in range(4): e("v_mov_b32 v%d, 0" % (LAL + j))
        e("s_mul_i32 s%d, s%d, %d" % (S_T1, S_ROLE, PB), "s_add_u32 s%d, s%d, s%d" % (S_T1, S_T1, S_BB),
          "v_min_u32 v6, 51, v%d" % L, "v_lshlrev_b32 v6, 4, v6", "v_add_u32 v6, s%d, v6" % S_T1,
          "ds_write_b128 v6, %s offset:%d" % (R(CI, 4), ZR * 16))
        e("s_mov_b32 s%d, %s" % (S_THA, f32(-1.0)), "s_mov_b32 s%d, %s" % (S_THB, f32(-1.0)),
          "s_mov_b32 s40, %s" % f32(LOG2E * 2 ** BETA), "s_mov_b32 s41, %s" % f32(2.0 ** -(BETA + 1)), "s_mov_b32 s42, %s" % f32(0.5 * LOG2E),
          "s_mov_b32 s43, 0xffff0000")
        na = OPT.get("na", 43)
        assert addr[na].startswith("v_and_b32 v6, 11") or na in (0, len(addr)), addr[na]
        e(addr[:na])
        e("s_waitcnt vmcnt(2)")
        self.stamp()
        for i in range(4):
            e("v_lshl_or_b32 v%d, v%d, 6, v%d" % (IX + i, IX + i, X))
            e("buffer_load_dwordx4 %s, v%d, s[36:39], 0 offen" % (R(G0 + 4 * i, 4), IX + i))
        Y = X + 4
        e("s_waitcnt vmcnt(4)",
          "v_dot2_f32_bf16 v%d, v%d, v%d, 0" % (Y, WL, HL),
          "v_lshlrev_b32 v%d, 16, v%d" % (Y + 1, WL), "v_and_b32 v%d, s43, v%d" % (Y + 2, WL),
          "v_mul_f32 v%d, s40, v%d" % (Y + 1, Y + 1), "v_mul_f32 v%d, s40, v%d" % (Y + 2, Y + 2),
          "v_add_f32_dpp v%d, v%d, v%d row_shr:1 row_mask:0xf bank_mask:0xf" % (Y, Y, Y),
          "v_cvt_pk_f16_f32 v%d, v%d, v%d" % (Y + 1, Y + 1, Y + 2),
          "v_and_b32 v%d, 15, v%d" % (Y + 3, L),
          "v_add_f32_dpp v%d, v%d, v%d row_shr:2 row_mask:0xf bank_mask:0xf" % (Y, Y, Y),
          "v_mul_u32_u24 v%d, 80, v%d" % (Y + 3, Y + 3), "v_lshrrev_b32 v%d, 4, v0" % (Y + 4),
          "v_add_f32_dpp v%d, v%d, v%d row_shr:4 row_mask:0xf bank_mask:0xf" % (Y, Y, Y),
          "v_lshlrev_b32 v%d, 1, v%d" % (Y + 4, Y + 4), "v_add_u32 v%d, %d, v%d" % (Y + 4, WF, Y + 4),
          "v_add_f32_dpp v%d, v%d, v%d row_shr:8 row_mask:0xf bank_mask:0xf" % (Y, Y, Y),
          "v_add_u32 v%d, v%d, v%d" % (Y + 3, Y + 3, Y + 4),
          "ds_write_b16 v%d, v%d" % (Y + 3, Y + 1), "ds_write_b16_d16_hi v%d, v%d offset:%d" % (Y + 3, Y + 1, WXS),
          "v_mul_f32 v%d, s42, v%d" % (Y, Y), "v_cvt_f16_f32 v%d, v%d" % (Y, Y),
          "s_mov_b32 exec_lo, 0x80008000", "s_mov_b32 exec_hi, 0x80008000",
          "ds_write_b16 v%d, v%d offset:%d" % (Y + 4, Y, GT - WF), "s_mov_b64 exec, -1",
          "v_lshlrev_b32 v%d, 2, v%d" % (Y + 3, L),
          "s_cmp_gt_u32 s%d, 3" % S_WAVE, "s_cbranch_scc1 L_sq_done", "s_cmp_eq_u32 s%d, 3" % S_WAVE, "s_cbranch_scc1 L_sq_p",
          "s_cmp_eq_u32 s%d, 2" % S_WAVE, "s_cbranch_scc1 L_sq_h",
          "v_mul_f32 v%d, s40, v%d" % (S0, S0), "v_min_u32 v4, 380, v4", "v_add_u32 v4, %d, v4" % BT,
          "s_cmp_eq_u32 s%d, 0" % S_WAVE, "s_cselect_b32 exec_hi, -1, 0",
          "ds_write_b32 v4, v%d" % S0, "s_mov_b64 exec, -1", "s_branch L_sq_done",
          "L_sq_h:",
          "v_mul_f32 v%d, s41, v%d" % (S0, S0), "v_mul_f32 v%d, s41, v%d" % (S1, S1),
          "v_lshrrev_b32 v%d, 1, v%d" % (Y, L), "v_xor_b32 v%d, v%d, v%d" % (Y, Y, L), "v_and_b32 v%d, 2, v%d" % (Y, Y), "v_cmp_eq_u32 vcc, 0, v%d" % Y,
          "v_cvt_pk_bf16_f32 v%d, v%d, v%d" % (S0, S0, S1), "v_add_u32 v%d, %d, v%d" % (Y + 3, HT, Y + 3),
          "v_cndmask_b32 v%d, 0, v%d, vcc" % (S0, S0), "ds_write_b32 v%d, v%d" % (Y + 3, S0), "s_branch L_sq_done",
          "L_sq_p:",
          "v_cvt_pk_f16_f32 v%d, v%d, v%d" % (S0, S0, S1), "v_and_b32 v%d, 60, v%d" % (Y + 3, Y + 3), "v_add_u32 v%d, %d, v%d" % (Y + 3, GT + 64, Y + 3),
          "ds_write_b32 v%d, v%d" % (Y + 3, S0),
          "L_sq_done:")
        e(addr[na:])
        e("v_add_u32 v1, %d, v1" % GT, "s_waitcnt lgkmcnt(0)", "s_barrier")
        self.stamp()
        for x in range(2): e(self.rd2(W + 8 * x, AWP, WXS * x, 32))
        for x in range(2):
            for i in range(4): e(self.rd(BIAS + 16 * x + 4 * i, ABT, 128 * x + 16 * i))
        for x in range(2): e(self.rd(HA + 4 * x, AH0, 128 * x), self.rd(HA + 8 + 4 * x, AH1, 128 * x))
        e(self.rd(GV, 1, 0), self.rd(PV, 1, 64))
        e("v_bfe_u32 v6, v%d, 1, 1" % L, "v_mul_u32_u24 v6, %d, v6" % WXS, "v_and_b32 v7, 8, v%d" % L, "v_lshlrev_b32 v7, 4, v7",
          "v_add_u32 v%d, v%d, v6" % (AWP, AWP), "v_add_u32 v%d, v%d, v7" % (AH0, AH0), "v_add_u32 v%d, v%d, v7" % (AH1, AH1))
        e("s_lshl_b32 s%d, s%d, 5" % (S_INC, S_ROLE), "s_mov_b32 s%d, 5" % S_CNT, "s_cmp_lg_u32 s%d, 0" % S_ROLE, "s_mov_b64 exec, s[32:33]")
        for j in range(4):
            g = G0 + 4 * j
            e("s_waitcnt vmcnt(%d)" % (3 - j))
            if j == 0: self.stamp()
            for i in range(4):
                e("v_lshlrev_b32 v%d, 16, v%d" % (X, g + i), "v_and_b32 v%d, s43, v%d" % (X + 1, g + i),
                  "v_cvt_pk_f16_f32 v%d, v%d, v%d" % (g + i, X, X + 1))
            o = ((j >> 1) * RB + (j & 1)) * 16
            e("ds_write_b128 v%d, %s offset:%d" % (AW, R(g, 4), o))
            w2 = "ds_write_b128 v%d, %s offset:%d" % (AW, R(g, 4), o + 800)
            if j < 2: e(w2)
            else: e("s_cbranch_scc1 L_nodup%d" % j, w2, "L_nodup%d:" % j)
        e("s_not_b64 exec, exec", "s_add_u32 s%d, s%d, %d" % (S_T0, S_BB, 25 * 32), "v_mov_b32 v%d, s%d" % (AW, S_T0),
          "s_mov_b64 exec, -1", "s_waitcnt lgkmcnt(0)")
        self.stamp()
        e("s_barrier")
        self.stamp()
        if isinstance(self.stamps, tuple):
            e("s_cmp_lg_u32 s%d, 0" % S_WAVE, "s_cbranch_scc1 L_noat", "s_not_b32 s44, s%d" % S_TS, "v_mov_b32 v1, 0", "v_mov_b32 v2, s44",
              "s_mov_b64 exec, 1", "global_atomic_umax v1, v2, s[18:19]", "s_mov_b64 exec, -1", "L_noat:")
        K = OPT.get("prio", 0)
        pro_end = len(self.L)
        pre = self.rd2(ES, AE, 0) + self.rd2(EB, AE, RB * 16) + self.rd2(T1, AT1, 0)
        if K >= 0: pre += ["s_cmp_eq_u32 s%d, 0" % S_ROLE, "s_cbranch_scc1 L_nop1", "s_setprio 1", "L_nop1:"]
        pre += ["s_waitcnt lgkmcnt(4)"] + self.vgen(VS, ES, 0) + self.vgen(VS, ES, 1) + ["s_waitcnt lgkmcnt(2)"] + self.vgen(VB, EB, 0)[:4]
        first = self.body("first", 0, "s%d" % S_INC)
        la = self.body("mid", 0, None); lb = self.body("mid", 32, "64")
        cold_loop = self.cold; self.cold = []
        last0 = self.body("last") + self.drain()
        last1 = self.body("last", left=True) + self.tail_left()
        sw = ["s_cmp_lg_u32 s%d, %d" % (S_CNT, K), "s_cbranch_scc1 L_nosw", "s_setprio 0", "L_nosw:"] if K >= 0 else []
        e(pre, first, "s_cmp_lg_u32 s%d, 0" % S_ROLE, "s_cbranch_scc1 L_loop", "s_add_u32 s%d, s%d, 1" % (S_CNT, S_CNT), "s_branch L_loopb", cold_loop,
          "L_loop:", la, "L_loopb:", lb,
          "s_sub_u32 s%d, s%d, 1" % (S_CNT, S_CNT), sw, "s_cmp_lg_u32 s%d, 0" % S_CNT, "s_cbranch_scc1 L_loop")
        self.stamp()
        e("s_cmp_lg_u32 s%d, 0" % S_ROLE, "s_cbranch_scc1 L_last1", last0, "s_branch L_fin", "L_last1:", last1, "L_fin:")
        n2 = ["s_nop 1"]
        bad = hz.check(pre + first + n2 + la + lb + n2 + la + lb + n2 + last0, "main0") + hz.check(first + n2 + lb + n2 + last1, "main1")
        self.stamp()
        A = V
        fin = ["v_min_f32 v%d, v%d, v%d" % (A, CI, CI + 5)]
        def red(op, regs_):
            o = []
            for mod in ("row_shr:1", "row_shr:2", "row_shr:4", "row_shr:8", "row_bcast:15 row_mask:0xa", "row_bcast:31 row_mask:0xc"):
                o.append("s_nop %d" % (1 if len(regs_) == 1 else 0))
                for r in regs_:
                    mm = mod if "row_mask" in mod else mod + " row_mask:0xf"
                    o.append("%s_dpp v%d, v%d, v%d %s bank_mask:0xf" % (op, r, r, r, mm))
            return o
        fin += red("v_min_f32", [A]) + ["s_nop 0", "v_readlane_b32 s%d, v%d, 63" % (S_T0, A), "s_nop 1",
               "v_sub_f32 v%d, s%d, v%d" % (A + 1, S_T0, CI), "v_sub_f32 v%d, s%d, v%d" % (A + 2, S_T0, CI + 5),
               "v_exp_f32 v%d, v%d" % (A + 1, A + 1), "v_exp_f32 v%d, v%d" % (A + 2, A + 2), "v_mov_b32 v%d, s%d" % (A + 4, S_T0),
               "v_mul_f32 v%d, v%d, v%d" % (A + 5, LAL, A + 1), "v_mul_f32 v%d, v%d, v%d" % (A + 6, ACA, A + 1),
               "v_fmac_f32 v%d, v%d, v%d" % (A + 5, LBE, A + 2), "v_fmac_f32 v%d, v%d, v%d" % (A + 6, ACB, A + 2)]
        fin += red("v_add_f32", [A + 5, A + 6])
        fin += ["s_lshl_b32 s%d, s%d, 4" % (S_T1, S_WAVE), "s_add_u32 s%d, s%d, %d" % (S_T1, S_T1, RED), "v_mov_b32 v%d, s%d" % (A + 8, S_T1),
                "s_mov_b32 exec_lo, 0", "s_mov_b32 exec_hi, 0x80000000",
                "ds_write_b128 v%d, %s" % (A + 8, R(A + 4, 4)), "s_waitcnt lgkmcnt(0)", "s_barrier",
                "s_cmp_lg_u32 s%d, 0" % S_ROLE, "s_cbranch_scc1 L_done",
                "ds_read_b128 %s, v%d offset:64" % (R(A + 12, 4), A + 8),
                "s_lshl_b32 s3, s3, 1", "v_mov_b32 v%d, s3" % (A + 9),
                "s_waitcnt lgkmcnt(0)",
                "v_min_f32 v%d, v%d, v%d" % (A, A + 4, A + 12),
                "v_sub_f32 v%d, v%d, v%d" % (A + 1, A, A + 4), "v_sub_f32 v%d, v%d, v%d" % (A + 2, A, A + 12),
                "v_exp_f32 v%d, v%d" % (A + 1, A + 1), "v_exp_f32 v%d, v%d" % (A + 2, A + 2), "s_nop 0",
                "v_mul_f32 v%d, v%d, v%d" % (A + 5, A + 5, A + 1), "v_mul_f32 v%d, v%d, v%d" % (A + 6, A + 6, A + 1),
                "v_fmac_f32 v%d, v%d, v%d" % (A + 5, A + 13, A + 2), "v_fmac_f32 v%d, v%d, v%d" % (A + 6, A + 14, A + 2),
                "v_rcp_f32 v%d, v%d" % (A + 5, A + 5), "s_nop 0", "v_mul_f32 v%d, v%d, v%d" % (A + 6, A + 6, A + 5),
                "v_cvt_pk_bf16_f32 v%d, v%d, v%d" % (A + 6, A + 6, A + 6),
                "global_store_short v%d, v%d, s[16:17]" % (A + 9, A + 6),
                "L_done:"]
        bad += hz.check(last0[-30:] + fin, "fin0") + hz.check(last1[-30:] + fin, "fin1")
        e(fin)
        if isinstance(self.stamps, tuple):
            kk = self.stamps[1]
            self.stamp()
            e("s_waitcnt lgkmcnt(0)", "s_cmp_lg_u32 s%d, %d" % (S_WAVE, self.stamps[2]), "s_cbranch_scc1 L_end",
              "v_mov_b32 v%d, 0" % (A + 9), "v_mov_b32 v%d, 0" % (A + 10),
              "global_atomic_umax v%d, v%d, v%d, s[18:19] sc0" % (A + 11, A + 9, A + 10), "s_waitcnt vmcnt(0)",
              "v_readlane_b32 s%d, v%d, 63" % (S_T0, A + 11), "s_nop 3", "s_not_b32 s%d, s%d" % (S_T0, S_T0),
              "s_sub_u32 s%d, s%d, s%d" % (S_T0, S_TS + 2 * kk, S_T0), "s_mul_i32 s%d, s%d, 10" % (S_T0, S_T0), "s_min_u32 s%d, s%d, 100000" % (S_T0, S_T0),
              "L_spin:", "s_memrealtime s[44:45]", "s_waitcnt lgkmcnt(0)", "s_sub_u32 s44, s44, s%d" % (S_TS + 2 * (self.nst - 1)),
              "s_cmp_lt_u32 s44, s%d" % S_T0, "s_cbranch_scc1 L_spin")
        elif self.stamps:
            self.stamp()
            e("s_load_dwordx2 s[18:19], s[0:1], 80", "s_waitcnt lgkmcnt(0)",
              "s_lshl_b32 s%d, s2, 3" % S_T0, "s_add_u32 s%d, s%d, s%d" % (S_T0, S_T0, S_WAVE), "s_lshl_b32 s%d, s%d, 6" % (S_T0, S_T0),
              "v_mov_b32 v%d, s%d" % (A + 9, S_T0))
            for k in range(self.nst):
                e("v_mov_b32 v%d, s%d" % (A + 10, S_TS + 2 * k), "global_store_dword v%d, v%d, s[18:19] offset:%d" % (A + 9, A + 10, 4 * k))
        e("L_end:", "s_endpgm")
        bad += hz.check(self.L[:pro_end], "prologue")
        e(self.cold)
        assert bad == 0, "hazards"

    def text(self):
        head = open("cdna_kernels/%s.s.ref" % NAME).read().split("; Override")[0]
        o = [head.rstrip(), "; Generated by gen/gen.py (hand-designed schedule, see comments there).",
             "; @launch grid=(256,1,1) block=(512,1,1) lds=%d" % LDS,
             '.amdgcn_target "amdgcn-amd-amdhsa--gfx950"', ".text", ".globl %s_kernel" % NAME, ".p2align 8",
             ".type %s_kernel,@function" % NAME, "%s_kernel:" % NAME]
        for l in self.L: o.append(l if l.endswith(":") or l.startswith(".") else "    " + l)
        o += ['.section .rodata,"a"', ".p2align 6", ".amdhsa_kernel %s_kernel" % NAME,
              "  .amdhsa_next_free_vgpr %d" % NV, "  .amdhsa_next_free_sgpr 102", "  .amdhsa_accum_offset %d" % NV,
              "  .amdhsa_group_segment_fixed_size 0", "  .amdhsa_kernarg_size 88", "  .amdhsa_user_sgpr_count 2",
              "  .amdhsa_user_sgpr_kernarg_segment_ptr 1", "  .amdhsa_system_sgpr_workgroup_id_x 1", ".end_amdhsa_kernel", ""]
        return "\n".join(o)

if __name__ == "__main__":
    stamps = "--stamps" in sys.argv
    for a in sys.argv:
        if a.startswith("--o="):
            for kv in a[4:].split(","):
                k, v = kv.split(":"); OPT[k] = int(v)
        if a.startswith("--amp="): stamps = ("amp", int(a[6:].split(",")[0]), int(a[6:].split(",")[1]))
    out = [a for a in sys.argv[1:] if not a.startswith("--")]
    g = Gen(stamps); g.build()
    open(out[0] if out else "cdna_kernels/%s.s" % NAME, "w").write(g.text())
```

```python
import sys, os, subprocess, struct, ctypes, time
sys.path.insert(0, "cdna_kernels")
import numpy as np
import cdna_launch as cl

HEAD = """; @launch grid=(1,1,1) block=(%(block)d,1,1) lds=0
.amdgcn_target "amdgcn-amd-amdhsa--gfx950"
.text
.globl mb_kernel
.p2align 8
.type mb_kernel,@function
mb_kernel:
    s_load_dwordx2 s[4:5], s[0:1], 0
    s_waitcnt lgkmcnt(0)
    s_mov_b32 s8, s4
    s_mov_b32 s9, s5
    s_mov_b32 s10, %(nbytes)d
    s_mov_b32 s11, 0x00020000
    v_lshrrev_b32 v1, 6, v0
    s_mul_i32 s3, s2, %(waves)d
    v_add_u32 v1, s3, v1
    v_lshlrev_b32 v1, 3, v1
    v_and_b32 v2, 63, v0
    v_lshlrev_b32 v2, 4, v2
%(init)s
    s_barrier
    s_mov_b32 s12, %(iters)d
    s_memrealtime s[26:27]
    s_memtime s[14:15]
    s_waitcnt lgkmcnt(0)
.p2align 6
L_loop:
%(body)s
    s_sub_u32 s12, s12, 1
    s_cmp_lg_u32 s12, 0
    s_cbranch_scc1 L_loop
    s_waitcnt lgkmcnt(0)
    s_nop 15
    s_memtime s[16:17]
    s_memrealtime s[28:29]
    s_waitcnt lgkmcnt(0)
    s_sub_u32 s16, s16, s14
    s_sub_u32 s28, s28, s26
    v_mov_b32 v4, s16
    v_mov_b32 v5, s28
    buffer_store_dwordx2 v[4:5], v1, s[8:11], 0 offen
    s_waitcnt vmcnt(0)
    s_endpgm
.section .rodata,"a"
.p2align 6
.amdhsa_kernel mb_kernel
  .amdhsa_next_free_vgpr %(nfv)d
  .amdhsa_next_free_sgpr 40
  .amdhsa_accum_offset %(vgpr)d
  .amdhsa_group_segment_fixed_size 0
  .amdhsa_kernarg_size 8
  .amdhsa_user_sgpr_count 2
  .amdhsa_user_sgpr_kernarg_segment_ptr 1
  .amdhsa_system_sgpr_workgroup_id_x 1
.end_amdhsa_kernel
"""

REPS = 3
LAST = None
def build(name, body, block, vgpr=128, iters=2000, init=None, nwg=1, agpr=0):
    waves = block // 64
    if init is None:
        L = []
        for r in range(4, vgpr):
            L.append("    v_mul_u32_u24 v%d, %d, v0" % (r, 40503 + 977 * r))
            L.append("    v_and_b32 v%d, 0x807f807f, v%d" % (r, r))
            L.append("    v_or_b32 v%d, 0x3f003f00, v%d" % (r, r))
        for r in range(agpr):
            L.append("    v_accvgpr_write_b32 a%d, v%d" % (r, 4 + r % (vgpr - 4)))
        init = "\n".join(L)
    asm = HEAD % dict(block=block, nbytes=8 * waves * nwg, waves=waves, init=init, iters=iters,
                      body="\n".join("    " + l for l in body), vgpr=vgpr, nfv=vgpr + agpr)
    asm = cl.with_harness_metadata(asm, "mb_kernel", 1)
    s = "mb_%s.s" % name
    co = "mb_%s.co" % name
    open(s, "w").write(asm)
    r = subprocess.run(["clang", "-x", "assembler", "-target", "amdgcn-amd-amdhsa",
                        "-mcpu=gfx950", s, "-o", co], capture_output=True, text=True)
    if r.returncode:
        print(r.stderr)
        raise SystemExit(1)
    return co

def run(name, body, block, vgpr=128, iters=2000, nwg=1, lds=16384, init=None, agpr=0):
    co = build(name, body, block, vgpr, iters, init, nwg, agpr)
    if not os.path.exists('/dev/kfd'):
        print(name, "assembled"); return
    waves = block // 64
    k = cl.AsmKernel(co, "mb_kernel", check=False)
    out = cl.DeviceBuffer(8 * waves * nwg)
    ka = cl.pack_ptr_kernargs([out.ptr])
    res = []
    for rep in range(REPS):
        cl._hip.hipDeviceSynchronize()
        t0 = time.perf_counter()
        k.launch((nwg, 1, 1), (block, 1, 1), ka, lds)
        cl.hip_check(cl._hip.hipDeviceSynchronize())
        t1 = time.perf_counter()
        o2 = out.to_numpy(np.uint32, (waves * nwg, 2)).astype(np.float64)
        o = o2[:, 0]
        res.append((o.max() / iters, o.min() / iters, (t1 - t0) * 1e6, o2[:, 0].sum() / o2[:, 1].sum() * 0.1, o2[:, 1].max() * 0.01))
        time.sleep(0.01)
    print("%-44s blk=%4d nwg=%4d cyc/iter max=%8.2f min=%8.2f wall=%.0fus clk=%.3fGHz rt=%.2fus" % (name, block, nwg, res[-1][0], res[-1][1], res[-1][2], res[-1][3], res[-1][4]))
    k.unload()
    global LAST
    LAST = res
    return res[-1][0]
```

```python
from mb import *
def R(b, n): return "v[%d:%d]" % (b, b + n - 1)
def m32(i): return "v_mfma_f32_32x32x16_f16 v[%d:%d], v[40:43], v[44:47], v[48:63]" % (8+16*(i%2), 23+16*(i%2))
cvt = lambda i: "v_cvt_pk_bf16_f32 v%d, |v%d|, |v%d|" % (64+(i%16), 80+2*(i%16), 81+2*(i%16))
for kind, n in (("b128", 4), ("b64", 2), ("b32", 1)):
  for every in (0, 4, 2):
    for nv in (6, 8):
        body = []; k = 0
        for i in range(16):
            body.append(m32(i))
            if every and i % every == 0:
                body.append("ds_write_%s v2, %s offset:%d" % (kind, R(120, n) if n > 1 else "v120", 1024 * (i % 8)))
            for j in range(nv): body.append(cvt(k)); k += 1
        out = []
        for blk in (256, 512, 1024):
            c = run("w%s_%d_%d_%d" % (kind, every, nv, blk), body, blk, iters=200)
            if c: out.append(c / (blk // 256))
        print("   ==> 16x(m32 + %d cvt) + %d ds_write_%s: cyc @1,2,4 waves: %s" % (nv, 16 // every if every else 0, kind, " ".join("%.1f" % x for x in out)))
```
